```python
import torch

def _softmax(x, axis=-1):
    return torch.softmax(x, dim=axis)
def _gelu(x):
    return torch.nn.functional.gelu(x, approximate="tanh")
def _silu(x):
    return torch.nn.functional.silu(x)
def _sigmoid(x):
    return torch.sigmoid(x)
def _layernorm(x, axis=-1, eps=1e-5):
    m = x.mean(dim=axis, keepdim=True)
    v = x.var(dim=axis, keepdim=True, unbiased=False)
    return (x - m) / torch.sqrt(v + eps)
def _scatter_add(tgt, idx, src, axis=0):
    return tgt.clone().index_add_(axis, idx, src)
def _segment_sum(src, seg, n):
    out = torch.zeros((n,) + src.shape[1:], dtype=src.dtype)
    return out.index_add_(0, seg, src)
def _pad(x, pw):
    flat = tuple(v for pair in reversed(pw) for v in pair)
    return torch.nn.functional.pad(x, flat)

kernel_name = 'concat_heads__mha_block_cached__mha_block_cached__near_ridge'

def setup_inputs():

    _w = (lambda a: (lambda t: t.to(torch.bfloat16) if t.is_floating_point() else t)(torch.as_tensor(a)))
    def _A_setup():
        B, Sq, D = 8, 112, 1024
        H, Sk, Dh = 32, 512, 128
        return {
            "x": _w((lambda *s: torch.randn(*s, dtype=torch.bfloat16) * 0.8)(B, Sq, D)),
            "k_cache": _w((lambda *s: torch.randn(*s, dtype=torch.bfloat16) * 0.8)(B, H, Sk, Dh)),
            "v_cache": _w((lambda *s: torch.randn(*s, dtype=torch.bfloat16) * 0.05)(B, H, Sk, Dh)),
            "wq": _w((lambda *s: torch.randn(*s, dtype=torch.bfloat16) * 0.8)(D, H * Dh) * (D ** -0.5)),
            "wo": _w((lambda *s: torch.randn(*s, dtype=torch.bfloat16) * 0.05)(H * Dh, D) * ((H * Dh) ** -0.5)),
        }
    _A_in = _A_setup()

    def _B_setup():
        B, Sq, D = 8, 112, 1024
        H, Sk, Dh = 32, 512, 128
        return {
            "x": _w((lambda *s: torch.randn(*s, dtype=torch.bfloat16) * 0.8)(B, Sq, D)),
            "k_cache": _w((lambda *s: torch.randn(*s, dtype=torch.bfloat16) * 0.8)(B, H, Sk, Dh)),
            "v_cache": _w((lambda *s: torch.randn(*s, dtype=torch.bfloat16) * 0.05)(B, H, Sk, Dh)),
            "wq": _w((lambda *s: torch.randn(*s, dtype=torch.bfloat16) * 0.8)(D, H * Dh) * (D ** -0.5)),
            "wo": _w((lambda *s: torch.randn(*s, dtype=torch.bfloat16) * 0.05)(H * Dh, D) * ((H * Dh) ** -0.5)),
        }
    _B_in = _B_setup()

    return {
        "A_x": _A_in["x"],
        "A_k_cache": _A_in["k_cache"],
        "A_v_cache": _A_in["v_cache"],
        "A_wq": _A_in["wq"],
        "A_wo": _A_in["wo"],
        "B_x": _B_in["x"],
        "B_k_cache": _B_in["k_cache"],
        "B_v_cache": _B_in["v_cache"],
        "B_wq": _B_in["wq"],
        "B_wo": _B_in["wo"],
    }

def reference(A_x, A_k_cache, A_v_cache, A_wq, A_wo, B_x, B_k_cache, B_v_cache, B_wq, B_wo):
    def _A_ref(x, k_cache, v_cache, wq, wo):
        B, Sq, D = x.shape
        H, Dh = 32, 128
        q = (lambda x, *d: x.permute(*d))((x @ wq).reshape(B, Sq, H, Dh), 0, 2, 1, 3)
        scores = torch.einsum("bhqd,bhkd->bhqk", q, k_cache) * (Dh ** -0.5)
        p = _softmax(scores, axis=-1)
        o = torch.einsum("bhqk,bhkd->bhqd", p, v_cache)
        return (lambda x, *d: x.permute(*d))(o, 0, 2, 1, 3).reshape(B, Sq, H * Dh) @ wo

    def _B_ref(x, k_cache, v_cache, wq, wo):
        B, Sq, D = x.shape
        H, Dh = 32, 128
        q = (lambda x, *d: x.permute(*d))((x @ wq).reshape(B, Sq, H, Dh), 0, 2, 1, 3)
        scores = torch.einsum("bhqd,bhkd->bhqk", q, k_cache) * (Dh ** -0.5)
        p = _softmax(scores, axis=-1)
        o = torch.einsum("bhqk,bhkd->bhqd", p, v_cache)
        return (lambda x, *d: x.permute(*d))(o, 0, 2, 1, 3).reshape(B, Sq, H * Dh) @ wo

    a = _A_ref(A_x, A_k_cache, A_v_cache, A_wq, A_wo)
    b = _B_ref(B_x, B_k_cache, B_v_cache, B_wq, B_wo)
    return torch.concatenate([a, b], axis=-1)
```

```python
import sys

NAME = "concat_heads__mha_block_cached__mha_block_cached__near_ridge"

class A:
    def __init__(self):
        self.l = []
    def __call__(self, s):
        self.l.append("    " + s)
    def lab(self, s):
        self.l.append(s + ":")
    def c(self, s):
        self.l.append("    ; " + s)
    def text(self):
        return "\n".join(self.l) + "\n"

def vr(a, n):
    return f"v[{a}:{a+n-1}]" if n > 1 else f"v{a}"
def ar(a, n):
    return f"a[{a}:{a+n-1}]" if n > 1 else f"a{a}"
def sr(a, n):
    return f"s[{a}:{a+n-1}]" if n > 1 else f"s{a}"

SCALE_C = 0.08838834764831845 * 1.4426950408889634
import struct
def f32bits(x):
    return struct.unpack("<I", struct.pack("<f", x))[0]

def gen_attn(a):
    sW = 3
    sX, sWQ, sK, sV, sO = 20, 24, 28, 32, 36
    sSlotR, sSlotW = 40, 41
    sM0base = 42
    sWQoff = 43
    sXoff = 44
    sKVoff = 45
    sCnt = 46
    sC = 47
    sT0, sT1, sT2, sT3 = 48, 49, 50, 51
    vLane = 1
    vWQd = 2
    vKVd = 6
    vXo = 8
    vA0w, vA0k, vA0v = 10, 11, 12
    vOst = 13
    vAd = 14
    vM = 22
    vL = 24
    vT = 26
    vP = 48
    ACC = 64
    FR = 128
    XR = 192
    QF = 192
    SS = 224

    def acc(mt, nt): return ACC + (mt * 2 + nt) * 4
    def xr(st, ks, nt): return XR + ((st * 2 + ks) * 2 + nt) * 4
    def qf(u, nt): return QF + (u * 2 + nt) * 4
    def ss(t, nt): return SS + (t * 2 + nt) * 4
    def pf(v, nt): return vP + (nt * 2 + v) * 4

    a.lab("attn_kernel")
    a("s_cmp_ge_u32 s2, 512")
    a("s_cbranch_scc1 L_attn_end")
    a("s_and_b32 s4, s2, 7")
    a("s_lshr_b32 s5, s2, 3")
    a("s_lshr_b32 s6, s4, 2")
    a("s_and_b32 s7, s4, 3")
    a("s_lshl_b32 s7, s7, 3")
    a("s_and_b32 s8, s5, 7")
    a("s_add_u32 s7, s7, s8")
    a("s_lshr_b32 s8, s5, 3")
    a("s_mul_i32 s9, s6, 40")
    a("s_add_u32 s10, s0, s9")
    a("s_addc_u32 s11, s1, 0")
    a("s_load_dwordx8 s[12:19], s[10:11], 0")
    a("s_load_dwordx2 s[52:53], s[0:1], 96")
    a(f"v_and_b32 v{vLane}, 63, v0")
    a("v_lshrrev_b32 v2, 6, v0")
    a("s_nop 0")
    a(f"v_readfirstlane_b32 s{sW}, v2")
    a(f"s_mov_b32 s{sC}, 0x{f32bits(SCALE_C):08x}")
    g, c, rp, cp = 40, 41, 42, 43
    a(f"v_lshrrev_b32 v{g}, 4, v{vLane}")
    a(f"v_and_b32 v{c}, 15, v{vLane}")
    a(f"v_bfe_u32 v{rp}, v{vLane}, 2, 2")
    a(f"v_and_b32 v{cp}, 3, v{vLane}")
    a(f"s_lshl_b32 s{sM0base}, s{sW}, 12")
    a(f"v_lshlrev_b32 v44, 1, v{g}")
    a(f"v_xor_b32 v44, v44, v{c}")
    a(f"v_lshlrev_b32 v44, 4, v44")
    a(f"v_lshl_add_u32 v44, v{g}, 8, v44")
    a(f"v_add_u32 v{vKVd}, s{sM0base}, v44")
    a(f"v_xor_b32 v{vKVd+1}, 128, v{vKVd}")
    a(f"v_and_b32 v44, 1, v{g}")
    a(f"v_and_b32 v45, 2, v{g}")
    a(f"v_lshl_or_b32 v44, v45, 1, v44")
    a(f"v_xor_b32 v44, v44, v{c}")
    a(f"v_lshlrev_b32 v44, 4, v44")
    a(f"v_lshl_add_u32 v44, v{g}, 13, v44")
    a(f"s_lshl_b32 s{sT0}, s{sW}, 17")
    a(f"v_add_u32 v44, s{sT0}, v44")
    a(f"v_mov_b32 v{vWQd}, v44")
    a(f"v_add_u32 v{vWQd+1}, {4*8192-1024}, v44")
    a(f"v_xor_b32 v45, 128, v44")
    a(f"v_add_u32 v{vWQd+2}, {2*(4*8192-1024)}, v45")
    a(f"v_add_u32 v{vWQd+3}, {3*(4*8192-1024)}, v45")
    a(f"v_lshlrev_b32 v44, 11, v{c}")
    a(f"v_lshl_add_u32 v44, v{g}, 4, v44")
    a(f"s_lshl_b32 s{sT0}, s{sW}, 16")
    a(f"v_add_u32 v{vXo}, s{sT0}, v44")
    a(f"v_add_u32 v{vXo+1}, 32768, v{vXo}")
    a(f"v_and_b32 v44, 1, v{rp}")
    a(f"v_and_b32 v45, 2, v{rp}")
    a(f"v_lshl_or_b32 v44, v45, 1, v44")
    a(f"v_and_b32 v45, 1, v{g}")
    a(f"v_lshl_or_b32 v44, v45, 3, v44")
    a(f"v_xor_b32 v44, v44, v{cp}")
    a(f"v_lshlrev_b32 v44, 4, v44")
    a(f"v_and_b32 v45, 1, v{cp}")
    a(f"v_lshl_or_b32 v44, v45, 3, v44")
    a(f"v_lshl_add_u32 v45, v{g}, 3, v{rp}")
    a(f"v_lshl_add_u32 v{vA0w}, v45, 8, v44")
    a(f"v_and_b32 v44, 7, v{c}")
    a(f"v_lshlrev_b32 v44, 1, v44")
    a(f"v_xor_b32 v44, v44, v{g}")
    a(f"v_lshlrev_b32 v44, 4, v44")
    a(f"v_lshl_add_u32 v{vA0k}, v{c}, 8, v44")
    a(f"v_and_b32 v44, 1, v{g}")
    a(f"v_lshl_add_u32 v44, v44, 2, v{rp}")
    a(f"v_lshlrev_b32 v44, 1, v44")
    a(f"v_lshrrev_b32 v45, 1, v{cp}")
    a(f"v_xor_b32 v44, v44, v45")
    a(f"v_lshlrev_b32 v44, 4, v44")
    a(f"v_and_b32 v45, 1, v{cp}")
    a(f"v_lshl_or_b32 v44, v45, 3, v44")
    a(f"v_lshl_add_u32 v45, v{g}, 2, v{rp}")
    a(f"v_lshl_add_u32 v{vA0v}, v45, 8, v44")
    a(f"s_lshl_b32 s{sT0}, s{sW}, 11")
    a(f"v_lshlrev_b32 v44, 4, v{vLane}")
    a(f"v_add_u32 v{vOst}, s{sT0}, v44")
    a(f"v_and_b32 v44, 1, v{g}")
    a(f"v_cmp_eq_u32 s[54:55], 1, v44")
    for i in range(64):
        a(f"v_mov_b32 v{ACC+i}, 0")
    a("s_waitcnt lgkmcnt(0)")
    a("s_mul_i32 s9, s8, 229376")
    a(f"s_add_u32 s{sX}, s12, s9")
    a(f"s_addc_u32 s{sX+1}, s13, 0")
    a(f"s_mov_b32 s{sX+2}, 229376")
    a(f"s_mov_b32 s{sX+3}, 0x00020000")
    a("s_lshl_b32 s9, s7, 8")
    a(f"s_add_u32 s{sWQ}, s18, s9")
    a(f"s_addc_u32 s{sWQ+1}, s19, 0")
    a(f"s_sub_u32 s{sWQ+2}, 8388608, s9")
    a(f"s_mov_b32 s{sWQ+3}, 0x00020000")
    a("s_lshl_b32 s9, s8, 5")
    a("s_add_u32 s9, s9, s7")
    a("s_lshl_b32 s9, s9, 17")
    a(f"s_add_u32 s{sK}, s14, s9")
    a(f"s_addc_u32 s{sK+1}, s15, 0")
    a(f"s_mov_b32 s{sK+2}, 131072")
    a(f"s_mov_b32 s{sK+3}, 0x00020000")
    a(f"s_add_u32 s{sV}, s16, s9")
    a(f"s_addc_u32 s{sV+1}, s17, 0")
    a(f"s_mov_b32 s{sV+2}, 131072")
    a(f"s_mov_b32 s{sV+3}, 0x00020000")
    a("s_lshl_b32 s9, s6, 3")
    a("s_add_u32 s9, s9, s8")
    a("s_lshl_b32 s9, s9, 7")
    a("s_lshl_b32 s10, s7, 2")
    a("s_add_u32 s9, s9, s10")
    a("s_mul_i32 s9, s9, 7168")
    a(f"s_add_u32 s{sO}, s52, s9")
    a(f"s_addc_u32 s{sO+1}, s53, 0")
    a(f"s_mov_b32 s{sO+2}, 28672")
    a(f"s_mov_b32 s{sO+3}, 0x00020000")

    a(f"s_mov_b32 s{sSlotR}, 0")
    a(f"s_mov_b32 s{sSlotW}, 0")
    a(f"s_mov_b32 s{sWQoff}, 0")
    a(f"s_mov_b32 s{sXoff}, 0")
    a(f"s_mov_b32 s{sKVoff}, 0")

    def adv_slot(s):
        a(f"s_add_u32 s{s}, s{s}, 16384")
        a(f"s_cmp_ge_u32 s{s}, 81920")
        a(f"s_cselect_b32 s{s}, 0, s{s}")

    def dma_wq():
        a(f"s_add_u32 m0, s{sSlotW}, s{sM0base}")
        a("s_nop 0")
        for i in range(4):
            a(f"buffer_load_dwordx4 v{vWQd+i}, {sr(sWQ,4)}, s{sWQoff} offen offset:{i*1024} lds")
        a(f"s_add_u32 s{sWQoff}, s{sWQoff}, {64*8192}")
        adv_slot(sSlotW)

    def dma_kv(srd, advance):
        a(f"s_add_u32 m0, s{sSlotW}, s{sM0base}")
        a("s_nop 0")
        for i in range(4):
            a(f"buffer_load_dwordx4 v{vKVd+(i&1)}, {sr(srd,4)}, s{sKVoff} offen offset:{i*1024} lds")
        if advance:
            a(f"s_add_u32 s{sKVoff}, s{sKVoff}, 16384")
        adv_slot(sSlotW)

    def xload(st):
        for ks in range(2):
            for nt in range(2):
                a(f"buffer_load_dwordx4 {vr(xr(st,ks,nt),4)}, v{vXo+nt}, {sr(sX,4)}, s{sXoff} offen offset:{ks*64}")
        a(f"s_add_u32 s{sXoff}, s{sXoff}, 128")

    for st in range(4):
        dma_wq()
        xload(st)

    def frag_pipeline(nfr, reads_per_frag, emit_read, emit_mfma, ahead):
        for f in range(min(ahead, nfr)):
            emit_read(f)
        for f in range(nfr):
            issued = min(f + ahead, nfr)
            outstanding_after = (issued - (f + 1)) * reads_per_frag
            a(f"s_waitcnt lgkmcnt({outstanding_after})")
            if f + ahead < nfr:
                emit_read(f + ahead)
            emit_mfma(f)

    def qproj_chunk(st, vm, next_dma, do_x):
        a(f"s_waitcnt vmcnt({vm})")
        a("s_barrier")
        next_dma()
        a(f"v_add_u32 v{vAd}, s{sSlotR}, v{vA0w}")
        for k in range(1, 8):
            u, e = k >> 1, k & 1
            a(f"v_xor_b32 v{vAd+k}, {(u<<6)|(e<<3)}, v{vAd}")
        adv_slot(sSlotR)
        def rd(f):
            ks, mt = f >> 3, f & 7
            for hh in range(2):
                a(f"ds_read_b64_tr_b16 {vr(FR+f*4+hh*2,2)}, v{vAd+mt} offset:{ks*8192+hh*1024}")
        def mm(f):
            ks, mt = f >> 3, f & 7
            for nt in range(2):
                a(f"v_mfma_f32_16x16x32_bf16 {vr(acc(mt,nt),4)}, {vr(FR+f*4,4)}, {vr(xr(st,ks,nt),4)}, {vr(acc(mt,nt),4)}")
        frag_pipeline(16, 2, rd, mm, 6)
        if do_x:
            xload(st)

    a(f"s_mov_b32 s{sCnt}, 0")
    a.lab("L_qp_loop")
    for st in range(4):
        qproj_chunk(st, 24, dma_wq, True)
    a(f"s_add_u32 s{sCnt}, s{sCnt}, 1")
    a(f"s_cmp_lt_u32 s{sCnt}, 3")
    a("s_cbranch_scc1 L_qp_loop")
    qproj_chunk(0, 24, lambda: dma_kv(sK, False), False)
    qproj_chunk(1, 20, lambda: dma_kv(sV, True), False)
    qproj_chunk(2, 16, lambda: dma_kv(sK, False), False)
    qproj_chunk(3, 12, lambda: dma_kv(sV, True), False)

    a("s_nop 7")
    a("s_mov_b64 vcc, s[54:55]")
    for u in range(4):
        for nt in range(2):
            X, Y = acc(2*u, nt), acc(2*u+1, nt)
            a(f"v_cvt_pk_bf16_f32 v{vT}, v{X}, v{X+1}")
            a(f"v_cvt_pk_bf16_f32 v{vT+1}, v{X+2}, v{X+3}")
            a(f"v_cvt_pk_bf16_f32 v{vT+2}, v{Y}, v{Y+1}")
            a(f"v_cvt_pk_bf16_f32 v{vT+3}, v{Y+2}, v{Y+3}")
            q = qf(u, nt)
            a(f"v_cndmask_b32 v{q}, v{vT}, v{vT+2}, vcc")
            a(f"v_cndmask_b32 v{q+1}, v{vT+1}, v{vT+3}, vcc")
            a(f"v_cndmask_b32 v{q+2}, v{vT+2}, v{vT}, vcc")
            a(f"v_cndmask_b32 v{q+3}, v{vT+3}, v{vT+1}, vcc")
    for i in range(64):
        a(f"v_mov_b32 v{ACC+i}, 0")
    for nt in range(2):
        a(f"v_mov_b32 v{vM+nt}, 0xff800000")
        a(f"v_mov_b32 v{vL+nt}, 0")

    a(f"s_mov_b32 s{sCnt}, 0")
    a.lab("L_at_loop")
    a("s_waitcnt vmcnt(12)")
    a("s_barrier")
    dma_kv(sK, False)
    a(f"v_add_u32 v{vAd}, s{sSlotR}, v{vA0k}")
    for ks in range(1, 4):
        a(f"v_xor_b32 v{vAd+ks}, {ks<<6}, v{vAd}")
    adv_slot(sSlotR)
    def rdk(f):
        t, ks = f >> 2, f & 3
        a(f"ds_read_b128 {vr(FR+f*4,4)}, v{vAd+ks} offset:{t*4096}")
    def mmk(f):
        t, ks = f >> 2, f & 3
        for nt in range(2):
            cin = "0" if ks == 0 else vr(ss(t,nt),4)
            a(f"v_mfma_f32_16x16x32_bf16 {vr(ss(t,nt),4)}, {vr(FR+f*4,4)}, {vr(qf(ks,nt),4)}, {cin}")
    frag_pipeline(16, 1, rdk, mmk, 8)
    a("s_waitcnt vmcnt(12)")
    a("s_barrier")
    dma_kv(sV, True)
    a(f"v_add_u32 v{vAd}, s{sSlotR}, v{vA0v}")
    for T in range(1, 8):
        a(f"v_xor_b32 v{vAd+T}, {T<<5}, v{vAd}")
    adv_slot(sSlotR)
    def rdv(f):
        v, T = f >> 3, f & 7
        for hh in range(2):
            a(f"ds_read_b64_tr_b16 {vr(FR+f*4+hh*2,2)}, v{vAd+T} offset:{v*8192+hh*4096}")
    AH = 6
    for f in range(AH):
        rdv(f)
    for nt in range(2):
        vals = [ss(t, nt) + r for t in range(4) for r in range(4)]
        mx = vT
        a(f"v_max3_f32 v{mx}, v{vals[0]}, v{vals[1]}, v{vals[2]}")
        for i in range(3, 15, 2):
            a(f"v_max3_f32 v{mx}, v{mx}, v{vals[i]}, v{vals[i+1]}")
        a(f"v_max_f32 v{mx}, v{mx}, v{vals[15]}")
        a(f"v_mov_b32 v{vT+1}, v{mx}")
        a("s_nop 1")
        a(f"v_permlane32_swap_b32 v{mx}, v{vT+1}")
        a("s_nop 1")
        a(f"v_max_f32 v{mx}, v{mx}, v{vT+1}")
        a(f"v_mov_b32 v{vT+1}, v{mx}")
        a("s_nop 1")
        a(f"v_permlane16_swap_b32 v{mx}, v{vT+1}")
        a("s_nop 1")
        a(f"v_max_f32 v{mx}, v{mx}, v{vT+1}")
        a(f"v_mul_f32 v{mx}, s{sC}, v{mx}")
        a(f"v_max_f32 v{mx}, v{mx}, v{vM+nt}")
        al = vT + 2
        a(f"v_sub_f32 v{al}, v{vM+nt}, v{mx}")
        a(f"v_exp_f32 v{al}, v{al}")
        a(f"v_mov_b32 v{vM+nt}, v{mx}")
        for x in vals:
            a(f"v_fma_f32 v{x}, v{x}, s{sC}, -v{mx}")
        for x in vals:
            a(f"v_exp_f32 v{x}, v{x}")
        a(f"v_mul_f32 v{vL+nt}, v{vL+nt}, v{al}")
        a(f"v_add_f32 v{vT+3}, v{vals[0]}, v{vals[1]}")
        a(f"v_add_f32 v{vT+4}, v{vals[2]}, v{vals[3]}")
        for i in range(4, 16, 2):
            a(f"v_add_f32 v{vT+3}, v{vT+3}, v{vals[i]}")
            a(f"v_add_f32 v{vT+4}, v{vT+4}, v{vals[i+1]}")
        a(f"v_add_f32 v{vT+3}, v{vT+3}, v{vT+4}")
        a(f"v_add_f32 v{vL+nt}, v{vL+nt}, v{vT+3}")
        for v in range(2):
            p = pf(v, nt)
            for hh in range(2):
                s0 = ss(2*v+hh, nt)
                a(f"v_cvt_pk_bf16_f32 v{p+hh*2}, v{s0}, v{s0+1}")
                a(f"v_cvt_pk_bf16_f32 v{p+hh*2+1}, v{s0+2}, v{s0+3}")
        for T in range(8):
            for r in range(4):
                x = acc(T, nt) + r
                a(f"v_mul_f32 v{x}, v{x}, v{al}")
    a("s_nop 1")
    for f in range(16):
        issued = min(f + AH, 16)
        a(f"s_waitcnt lgkmcnt({(issued-(f+1))*2})")
        if f + AH < 16:
            rdv(f + AH)
        v, T = f >> 3, f & 7
        for nt in range(2):
            a(f"v_mfma_f32_16x16x32_bf16 {vr(acc(T,nt),4)}, {vr(FR+f*4,4)}, {vr(pf(v,nt),4)}, {vr(acc(T,nt),4)}")
    a(f"s_add_u32 s{sCnt}, s{sCnt}, 1")
    a(f"s_cmp_lt_u32 s{sCnt}, 8")
    a("s_cbranch_scc1 L_at_loop")

    a("s_nop 7")
    a("s_nop 1")
    for nt in range(2):
        l = vL + nt
        a(f"v_mov_b32 v{vT+1}, v{l}")
        a("s_nop 1")
        a(f"v_permlane32_swap_b32 v{l}, v{vT+1}")
        a("s_nop 1")
        a(f"v_add_f32 v{l}, v{l}, v{vT+1}")
        a(f"v_mov_b32 v{vT+1}, v{l}")
        a("s_nop 1")
        a(f"v_permlane16_swap_b32 v{l}, v{vT+1}")
        a("s_nop 1")
        a(f"v_add_f32 v{l}, v{l}, v{vT+1}")
        a(f"v_rcp_f32 v{l}, v{l}")
    a("s_nop 0")
    a(f"s_mov_b32 s{sT1}, 7168")
    a(f"s_mov_b32 s{sT2}, 14336")
    a(f"s_mov_b32 s{sT3}, 21504")
    for nt in range(2):
        if nt == 1:
            a(f"s_cmp_eq_u32 s{sW}, 3")
            a("s_cbranch_scc1 L_attn_end")
        for tp in range(4):
            o = FR + (nt * 4 + tp) * 4
            for hh in range(2):
                x = acc(2*tp+hh, nt)
                for r in range(4):
                    a(f"v_mul_f32 v{x+r}, v{x+r}, v{vL+nt}")
                a(f"v_cvt_pk_bf16_f32 v{o+hh*2}, v{x}, v{x+1}")
                a(f"v_cvt_pk_bf16_f32 v{o+hh*2+1}, v{x+2}, v{x+3}")
            so = "0" if tp == 0 else f"s{sT0+tp}"
            a(f"buffer_store_dwordx4 {vr(o,4)}, v{vOst}, {sr(sO,4)}, {so} offen offset:{nt*1024}")
    a.lab("L_attn_end")
    a("s_endpgm")

def gen_oproj(a):
    sW = 3
    sOo, sWO, sOUT = 20, 24, 28
    sKo, sKw = 32, 33
    sPo, sPw = 34, 35
    sCnt = 36
    sSel0, sSel1 = 37, 38
    sBig = 39
    vLane = 1
    vO0, vO1 = 2, 3
    vW = 4
    vT = 12
    ST = 64
    AF = 240
    NST = 4
    def raw(st, j): return ST + st * 44 + j * 2
    def of(st, nt): return ST + st * 44 + 16 + nt * 4
    def acc(i, nt): return (nt * 4 + i) * 4

    a.lab("oproj_kernel")
    a("s_cmp_ge_u32 s2, 256")
    a("s_cbranch_scc1 L_op_end")
    a("s_and_b32 s4, s2, 7")
    a("s_lshr_b32 s5, s2, 3")
    a("s_lshr_b32 s6, s4, 2")
    a("s_bfe_u32 s7, s4, 0x10001")
    a("s_lshl_b32 s7, s7, 2")
    a("s_and_b32 s8, s5, 3")
    a("s_add_u32 s7, s7, s8")
    a("s_and_b32 s8, s4, 1")
    a("s_lshl_b32 s8, s8, 3")
    a("s_lshr_b32 s9, s5, 2")
    a("s_add_u32 s8, s8, s9")
    a("s_mul_i32 s9, s6, 40")
    a("s_add_u32 s10, s0, s9")
    a("s_addc_u32 s11, s1, 0")
    a("s_load_dwordx2 s[12:13], s[10:11], 32")
    a("s_load_dwordx2 s[14:15], s[0:1], 80")
    a("s_load_dwordx2 s[16:17], s[0:1], 96")
    a(f"v_and_b32 v{vLane}, 63, v0")
    a("v_lshrrev_b32 v8, 6, v0")
    a("s_nop 0")
    a(f"v_readfirstlane_b32 s{sW}, v8")
    a(f"s_mov_b32 s{sSel0}, 0x05040100")
    a(f"s_mov_b32 s{sSel1}, 0x07060302")
    a(f"s_mov_b32 s{sBig}, 0x7f000000")
    g, c = 9, 10
    a(f"v_lshrrev_b32 v{g}, 4, v{vLane}")
    a(f"v_and_b32 v{c}, 15, v{vLane}")
    a(f"v_lshlrev_b32 v{vO0}, 4, v{vLane}")
    a(f"v_add_u32 v{vO1}, 4096, v{vO0}")
    a(f"v_lshlrev_b32 v11, 3, v{c}")
    a(f"v_lshl_add_u32 v{vW}, v{g}, 13, v11")
    a(f"v_add_u32 v{vW+1}, 4096, v{vW}")
    a(f"v_add_u32 v{vW+2}, 32768, v{vW}")
    a(f"v_add_u32 v{vW+3}, 36864, v{vW}")
    for i in range(112):
        a(f"v_accvgpr_write_b32 a{i}, 0")
    a("s_waitcnt lgkmcnt(0)")
    a("s_lshl_b32 s9, s6, 3")
    a("s_add_u32 s9, s9, s7")
    a("s_mul_i32 s9, s9, 917504")
    a(f"s_add_u32 s{sOo}, s16, s9")
    a(f"s_addc_u32 s{sOo+1}, s17, 0")
    a(f"s_mov_b32 s{sOo+2}, 917504")
    a(f"s_mov_b32 s{sOo+3}, 0x00020000")
    a("s_lshl_b32 s9, s8, 7")
    a(f"s_add_u32 s{sWO}, s12, s9")
    a(f"s_addc_u32 s{sWO+1}, s13, 0")
    a(f"s_sub_u32 s{sWO+2}, 8388608, s9")
    a(f"s_mov_b32 s{sWO+3}, 0x00020000")
    a("s_mul_i32 s10, s7, 458752")
    a("s_lshl_b32 s11, s6, 11")
    a("s_add_u32 s10, s10, s11")
    a("s_add_u32 s10, s10, s9")
    a(f"s_add_u32 s{sOUT}, s14, s10")
    a(f"s_addc_u32 s{sOUT+1}, s15, 0")
    a(f"s_mov_b32 s{sOUT+2}, {111*4096+128}")
    a(f"s_mov_b32 s{sOUT+3}, 0x00020000")
    a(f"s_mul_i32 s{sKo}, s{sW}, {32*7168}")
    a(f"s_lshl_b32 s{sKw}, s{sW}, 21")

    def ld_wo(st, so):
        for j in range(8):
            a(f"buffer_load_dwordx2 {vr(raw(st,j),2)}, v{vW+(j>>1)}, {sr(sWO,4)}, s{so} offen offset:{(j&1)*2048}")
    def ld_o(st, so):
        for nt in range(7):
            v = vO0 if nt < 4 else vO1
            a(f"buffer_load_dwordx4 {vr(of(st,nt),4)}, v{v}, {sr(sOo,4)}, s{so} offen offset:{(nt&3)*1024}")
    for st in range(NST):
        ld_wo(st, sKw)
        ld_o(st, sKo)
        a(f"s_add_u32 s{sKw}, s{sKw}, 65536")
        a(f"s_add_u32 s{sKo}, s{sKo}, 7168")
    a(f"s_mov_b32 s{sCnt}, 0")
    a.lab("L_op_loop")
    for st in range(NST):
        a(f"s_cmp_lt_u32 s{sCnt}, {32//NST - 1}")
        a(f"s_cselect_b32 s{sPw}, s{sKw}, s{sBig}")
        a(f"s_cselect_b32 s{sPo}, s{sKo}, s{sBig}")
        a(f"s_waitcnt vmcnt({(NST-1)*15})")
        for i in range(4):
            for t in range(4):
                lo = raw(st, 2*t) + (i >> 1)
                hi = raw(st, 2*t+1) + (i >> 1)
                sel = sSel0 if (i & 1) == 0 else sSel1
                a(f"v_perm_b32 v{AF+i*4+t}, v{hi}, v{lo}, s{sel}")
        ld_wo(st, sPw)
        for nt in range(7):
            for i in range(4):
                a(f"v_mfma_f32_16x16x32_bf16 {ar(acc(i,nt),4)}, {vr(AF+i*4,4)}, {vr(of(st,nt),4)}, {ar(acc(i,nt),4)}")
        ld_o(st, sPo)
        a(f"s_add_u32 s{sKw}, s{sKw}, 65536")
        a(f"s_add_u32 s{sKo}, s{sKo}, 7168")
    a(f"s_add_u32 s{sCnt}, s{sCnt}, 1")
    a(f"s_cmp_lt_u32 s{sCnt}, {32//NST}")
    a("s_cbranch_scc1 L_op_loop")
    a("s_nop 7")
    a("s_nop 1")
    a(f"s_mul_i32 s4, s{sW}, 28672")
    a(f"v_add_u32 v{vT}, s4, v{vO0}")
    for nt in range(7):
        for i in range(4):
            a(f"ds_write_b128 v{vT}, {ar(acc(i,nt),4)} offset:{(nt*4+i)*1024}")
    a("s_waitcnt vmcnt(0) lgkmcnt(0)")
    a("s_barrier")
    a(f"s_lshl_b32 s4, s{sW}, 13")
    a(f"v_add_u32 v{vT}, s4, v{vO0}")
    a(f"v_add_u32 v{vT+1}, 57344, v{vT}")
    a(f"v_lshlrev_b32 v{vT+2}, 12, v{c}")
    a(f"v_lshl_add_u32 v{vT+2}, v{g}, 5, v{vT+2}")
    a(f"s_lshl_b32 s4, s{sW}, 17")
    a(f"v_add_u32 v{vT+2}, s4, v{vT+2}")
    a(f"s_mov_b32 s5, 65536")
    for n2 in range(2):
        if n2 == 1:
            a(f"s_cmp_eq_u32 s{sW}, 3")
            a("s_cbranch_scc1 L_op_end")
        R = 64
        for i in range(4):
            for pw in range(4):
                vb = vT if pw < 2 else vT + 1
                a(f"ds_read_b128 {vr(R+(i*4+pw)*4,4)}, v{vb} offset:{(pw&1)*28672+n2*4096+i*1024}")
        a("s_waitcnt lgkmcnt(0)")
        for i in range(4):
            for r in range(4):
                b0 = R + (i*4)*4 + r
                a(f"v_add_f32 v{b0}, v{b0}, v{b0+4}")
                a(f"v_add_f32 v{b0+8}, v{b0+8}, v{b0+12}")
                a(f"v_add_f32 v{b0}, v{b0}, v{b0+8}")
        O = 144 + n2 * 8
        for r in range(4):
            a(f"v_cvt_pk_bf16_f32 v{O+r*2}, v{R+0*16+r}, v{R+1*16+r}")
            a(f"v_cvt_pk_bf16_f32 v{O+r*2+1}, v{R+2*16+r}, v{R+3*16+r}")
        so = "0" if n2 == 0 else "s5"
        a(f"buffer_store_dwordx4 {vr(O,4)}, v{vT+2}, {sr(sOUT,4)}, {so} offen")
        a(f"buffer_store_dwordx4 {vr(O+4,4)}, v{vT+2}, {sr(sOUT,4)}, {so} offen offset:16")
    a.lab("L_op_end")
    a("s_endpgm")


HEADER = open("cdna_kernels/" + NAME + ".s.ref").read().split("; Override launch")[0]

def kd(name, vgpr, accum, sgpr=96):
    return f""".amdhsa_kernel {name}
  .amdhsa_next_free_vgpr {vgpr}
  .amdhsa_next_free_sgpr {sgpr}
  .amdhsa_accum_offset {accum}
  .amdhsa_group_segment_fixed_size 0
  .amdhsa_kernarg_size 104
  .amdhsa_user_sgpr_count 2
  .amdhsa_user_sgpr_kernarg_segment_ptr 1
  .amdhsa_system_sgpr_workgroup_id_x 1
.end_amdhsa_kernel
"""

def main():
    out = HEADER
    out += "; @launch kernel=attn_kernel grid=(512,1,1) block=(256,1,1) lds=81920\n"
    out += "; @launch kernel=oproj_kernel grid=(256,1,1) block=(256,1,1) lds=114688\n"
    out += '.amdgcn_target "amdgcn-amd-amdhsa--gfx950"\n.text\n'
    for name, fn in (("attn_kernel", gen_attn), ("oproj_kernel", gen_oproj)):
        a = A()
        fn(a)
        out += f".globl {name}\n.p2align 8\n.type {name},@function\n" + a.text()
    out += '.section .rodata,"a"\n.p2align 6\n'
    out += kd("attn_kernel", 256, 256)
    out += ".p2align 6\n"
    out += kd("oproj_kernel", 368, 256)
    path = sys.argv[1] if len(sys.argv) > 1 else "cdna_kernels/" + NAME + ".s"
    open(path, "w").write(out)

if __name__ == "__main__":
    main()
```

```python
import sys, os, struct
DIAG = int(os.environ.get("DIAG", "0"))
NAME = "concat_heads__mha_block_cached__mha_block_cached__near_ridge"
PF_WQ = int(os.environ.get("PF_WQ", "1"))
PF_WO = int(os.environ.get("PF_WO", "1"))
OP_DEPTH = int(os.environ.get("OP_DEPTH", "4"))
PRIO = int(os.environ.get("PRIO", "1"))

class A:
    def __init__(self):
        self.l = []
    def __call__(self, s):
        self.l.append("    " + s)
    def lab(self, s):
        self.l.append(s + ":")
    def text(self):
        return "\n".join(self.l) + "\n"

def vr(a, n):
    return f"v[{a}:{a+n-1}]" if n > 1 else f"v{a}"
def ar(a, n):
    return f"a[{a}:{a+n-1}]" if n > 1 else f"a{a}"
def sr(a, n):
    return f"s[{a}:{a+n-1}]" if n > 1 else f"s{a}"

SCALE_C = 0.08838834764831845 * 1.4426950408889634
def f32bits(x):
    return struct.unpack("<I", struct.pack("<f", x))[0]

def stamp(a, i):
    if DIAG:
        a("s_waitcnt lgkmcnt(0)")
        a(f"s_memtime s[{60+2*i}:{61+2*i}]")
        a("s_waitcnt lgkmcnt(0)")
def diag_dump(a, wsreg, sW, region, lg=2):
    if not DIAG: return
    a("s_memrealtime s[80:81]")
    a("s_getreg_b32 s82, hwreg(HW_REG_HW_ID)")
    a("s_getreg_b32 s83, hwreg(HW_REG_XCC_ID)")
    a("s_waitcnt lgkmcnt(0)")
    a(f"s_lshl_b32 s84, s2, {lg}")
    a(f"s_add_u32 s84, s84, s{sW}")
    a(f"s_lshl_b32 s84, s84, 7")
    a(f"s_add_u32 s84, s84, {region}")
    a(f"s_add_u32 s88, s{wsreg}, s84")
    a(f"s_addc_u32 s89, s{wsreg+1}, 0")
    a("s_mov_b32 s90, 128")
    a("s_mov_b32 s91, 0x00020000")
    a("v_mov_b32 v1, 0")
    for i in range(24):
        a(f"v_mov_b32 v2, s{60+i}")
        a(f"buffer_store_dword v2, v1, s[88:91], 0 offen offset:{i*4}")
        a("s_waitcnt vmcnt(0)")

class VM:
    def __init__(self):
        self.ops = []
    def issue(self, tag, n):
        self.ops += [tag] * n
    def need(self, *tags):
        last = max(i for i, t in enumerate(self.ops) if t in tags)
        for t in tags:
            assert t in self.ops, t
        return len(self.ops) - 1 - last

KVF = os.environ.get("KVF", "")
WQF = os.environ.get("WQF", "")
KV_START = int(os.environ.get("KV_START", "20"))

def gen_attn(a):
    sW = 3
    sWq = 99
    sX, sWQ, sK, sV, sO, sWO = 20, 24, 28, 32, 36, 56
    sSlotR, sSlotW = 40, 41
    sM0kv = 42
    sWQoff = 43
    sXoff = 44
    sKVoff = 45
    sCnt = 46
    sC = 47
    sT0, sT1, sT2, sT3 = 48, 49, 50, 51
    sM0q = 92
    sM0x = 93
    vLane = 1
    vWQd = 2
    vXd = 4
    vKVd = 6
    vXa = 8
    vA0k, vA0v = 11, 12
    vOst = 13
    vAd = 14
    vM = 24
    vL = 26
    vT = 28
    vPFd = 44
    vP = 48
    ACC = 64
    FR = 128
    QF = 192
    SS = 224
    QB = [128, 160]
    XB = [192, 208]
    WQ0, X0 = 65536, 131072

    def acc(mt, nt): return ACC + (mt * 2 + nt) * 4
    def qf(u, nt): return QF + (u * 2 + nt) * 4
    def ss(t, nt): return SS + (t * 2 + nt) * 4
    def pf(v, nt): return vP + (nt * 2 + v) * 4

    a.lab("attn_kernel")
    a("s_cmp_ge_u32 s2, 256")
    a("s_cbranch_scc1 L_attn_end")
    stamp(a, 0)
    if DIAG: a("s_memrealtime s[78:79]")
    a("s_and_b32 s4, s2, 7")
    a("s_lshr_b32 s5, s2, 3")
    a("s_lshr_b32 s6, s4, 2")
    a("s_and_b32 s7, s4, 3")
    a("s_lshl_b32 s7, s7, 2")
    a("s_and_b32 s8, s5, 3")
    a("s_add_u32 s7, s7, s8")
    a("s_lshr_b32 s8, s5, 2")
    a("s_mul_i32 s9, s6, 40")
    a("s_add_u32 s10, s0, s9")
    a("s_addc_u32 s11, s1, 0")
    a("s_load_dwordx8 s[12:19], s[10:11], 0")
    a("s_load_dwordx2 s[94:95], s[10:11], 32")
    a("s_load_dwordx2 s[52:53], s[0:1], 96")
    a(f"v_and_b32 v{vLane}, 63, v0")
    a("v_lshrrev_b32 v2, 6, v0")
    a("s_nop 0")
    a(f"v_readfirstlane_b32 s{sW}, v2")
    a(f"s_mov_b32 s{sC}, 0x{f32bits(SCALE_C):08x}")
    g, c, rp, cp = 36, 37, 38, 39
    t0, t1 = 40, 41
    a(f"v_lshrrev_b32 v{g}, 4, v{vLane}")
    a(f"v_and_b32 v{c}, 15, v{vLane}")
    a(f"v_bfe_u32 v{rp}, v{vLane}, 2, 2")
    a(f"v_and_b32 v{cp}, 3, v{vLane}")
    a(f"s_and_b32 s{sWq}, s{sW}, 3")
    a(f"s_lshr_b32 s96, s{sW}, 2")
    a(f"s_lshl_b32 s{sM0kv}, s{sW}, 12")
    a(f"s_lshl_b32 s{sM0q}, s{sW}, 11")
    a(f"s_add_u32 s{sM0x}, s{sM0q}, {X0}")
    a(f"s_add_u32 s{sM0q}, s{sM0q}, {WQ0}")
    a(f"v_lshrrev_b32 v{t0}, 5, v{vLane}")
    a(f"s_bfe_u32 s{sT0}, s{sW}, 0x10001")
    a(f"s_lshl_b32 s{sT0}, s{sT0}, 3")
    a(f"v_or_b32 v{t1}, s{sT0}, v{t0}")
    a(f"v_xor_b32 v{t1}, v{t1}, v{c}")
    a(f"v_lshlrev_b32 v{t1}, 4, v{t1}")
    a(f"v_lshl_add_u32 v{t1}, v{t0}, 13, v{t1}")
    a(f"v_and_b32 v{t0}, 1, v{g}")
    a(f"v_lshl_add_u32 v{t1}, v{t0}, 8, v{t1}")
    a(f"s_lshl_b32 s{sT0}, s{sW}, 15")
    a(f"v_add_u32 v{vWQd}, s{sT0}, v{t1}")
    a(f"v_xor_b32 v{t1}, 64, v{vWQd}")
    a(f"v_add_u32 v{vWQd+1}, {2*8192-1024}, v{t1}")
    a(f"v_and_b32 v{t1}, 7, v{vLane}")
    a(f"v_xor_b32 v{t0}, v{g}, v{t1}")
    a(f"v_lshlrev_b32 v{t0}, 4, v{t0}")
    a(f"v_lshrrev_b32 v{t1}, 3, v{vLane}")
    a(f"v_lshl_add_u32 v{t0}, v{t1}, 11, v{t0}")
    a(f"v_add_u32 v{vXd}, s{sT0}, v{t0}")
    a(f"v_xor_b32 v{t0}, 64, v{vXd}")
    a(f"v_add_u32 v{vXd+1}, {8*2048-1024}, v{t0}")
    a("s_waitcnt lgkmcnt(0)")
    a("s_mul_i32 s9, s8, 229376")
    a(f"s_add_u32 s{sX}, s12, s9")
    a(f"s_addc_u32 s{sX+1}, s13, 0")
    a(f"s_mov_b32 s{sX+2}, 229376")
    a(f"s_mov_b32 s{sX+3}, 0x00020000")
    a("s_lshl_b32 s9, s7, 9")
    a(f"s_add_u32 s{sWQ}, s18, s9")
    a(f"s_addc_u32 s{sWQ+1}, s19, 0")
    a(f"s_sub_u32 s{sWQ+2}, 8388608, s9")
    a(f"s_mov_b32 s{sWQ+3}, 0x00020000")
    a(f"s_mov_b32 s{sWQoff}, 0")
    a(f"s_mov_b32 s{sXoff}, 0")

    vm = VM()
    def wq_pieces(cn):
        q = cn & 3
        def p0():
            a(f"s_add_u32 m0, s{sM0q}, {q*16384}")
            a("s_nop 0")
            a(f"buffer_load_dwordx4 v{vWQd}, {sr(sWQ,4)}, s{sWQoff} offen {WQF} lds")
            vm.issue(("wq", cn), 1)
        def p1():
            a(f"s_add_u32 m0, s{sM0q}, {q*16384}")
            a("s_nop 0")
            a(f"buffer_load_dwordx4 v{vWQd+1}, {sr(sWQ,4)}, s{sWQoff} offen offset:1024 {WQF} lds")
            a(f"s_add_u32 s{sWQoff}, s{sWQoff}, {32*8192}")
            vm.issue(("wq", cn), 1)
        return [p0, p1]
    def x_pieces(m):
        q = m & 1
        def p0():
            a(f"s_add_u32 m0, s{sM0x}, {q*16384}")
            a("s_nop 0")
            a(f"buffer_load_dwordx4 v{vXd}, {sr(sX,4)}, s{sXoff} offen lds")
            vm.issue(("x", m), 1)
        def p1():
            a(f"s_add_u32 m0, s{sM0x}, {q*16384}")
            a("s_nop 0")
            a(f"buffer_load_dwordx4 v{vXd+1}, {sr(sX,4)}, s{sXoff} offen offset:1024 lds")
            a(f"s_add_u32 s{sXoff}, s{sXoff}, 128")
            vm.issue(("x", m), 1)
        return [p0, p1]
    def kv_pieces(n):
        srd = sK if n % 2 == 0 else sV
        out = []
        for i in range(4):
            def p(i=i):
                a(f"s_add_u32 m0, s{sM0kv}, {n*32768}")
                a(f"s_mov_b32 s{sT0}, {(n>>1)*16384}")
                a(f"buffer_load_dwordx4 v{vKVd+(i&1)}, {sr(srd,4)}, s{sT0} offen offset:{i*1024} {KVF} lds")
                vm.issue(("kv", n), 1)
            out.append(p)
        return out

    for p in x_pieces(0) + wq_pieces(0) + wq_pieces(1) + x_pieces(1) + wq_pieces(2) + wq_pieces(3):
        p()

    a(f"v_lshrrev_b32 v{t0}, 1, v{c}")
    a(f"v_xor_b32 v{t0}, v{t0}, v{g}")
    a(f"v_lshlrev_b32 v{t0}, 4, v{t0}")
    a(f"v_lshl_add_u32 v{t0}, v{c}, 7, v{t0}")
    a(f"s_lshl_b32 s{sT0}, s{sWq}, 12")
    a(f"s_add_u32 s{sT0}, s{sT0}, {X0}")
    a(f"v_add_u32 v{vXa}, s{sT0}, v{t0}")
    a(f"v_xor_b32 v{vXa+1}, 64, v{vXa}")
    a(f"v_and_b32 v{t0}, 1, v{rp}")
    a(f"v_and_b32 v{t1}, 2, v{rp}")
    a(f"v_lshl_or_b32 v{t0}, v{t1}, 1, v{t0}")
    a(f"v_and_b32 v{t1}, 1, v{g}")
    a(f"v_lshl_or_b32 v{t0}, v{t1}, 3, v{t0}")
    a(f"v_xor_b32 v{t0}, v{t0}, v{cp}")
    a(f"v_lshlrev_b32 v{t0}, 4, v{t0}")
    a(f"v_and_b32 v{t1}, 1, v{cp}")
    a(f"v_lshl_or_b32 v{t0}, v{t1}, 3, v{t0}")
    a(f"v_lshl_add_u32 v{t1}, v{g}, 3, v{rp}")
    a(f"v_lshl_add_u32 v{t0}, v{t1}, 9, v{t0}")
    a(f"s_lshl_b32 s{sT0}, s96, 8")
    a(f"s_add_u32 s{sT0}, s{sT0}, {WQ0}")
    a(f"v_add_u32 v{vAd}, s{sT0}, v{t0}")
    for k in range(1, 8):
        u, e = k >> 1, k & 1
        a(f"v_xor_b32 v{vAd+k}, {(u<<6)|(e<<3)}, v{vAd}")
    a(f"v_lshlrev_b32 v{t0}, 1, v{g}")
    a(f"v_xor_b32 v{t0}, v{t0}, v{c}")
    a(f"v_lshlrev_b32 v{t0}, 4, v{t0}")
    a(f"v_lshl_add_u32 v{t0}, v{g}, 8, v{t0}")
    a(f"s_lshl_b32 s{sT0}, s{sWq}, 12")
    a(f"v_add_u32 v{vKVd}, s{sT0}, v{t0}")
    a(f"v_xor_b32 v{vKVd+1}, 128, v{vKVd}")
    a(f"s_lshl_b32 s{sT1}, s96, 14")
    a(f"v_and_b32 v{t0}, 7, v{c}")
    a(f"v_lshlrev_b32 v{t0}, 1, v{t0}")
    a(f"v_xor_b32 v{t0}, v{t0}, v{g}")
    a(f"v_lshlrev_b32 v{t0}, 4, v{t0}")
    a(f"v_lshl_add_u32 v{t0}, v{c}, 8, v{t0}")
    a(f"v_add_u32 v{vA0k}, s{sT1}, v{t0}")
    a(f"v_and_b32 v{t0}, 1, v{g}")
    a(f"v_lshl_add_u32 v{t0}, v{t0}, 2, v{rp}")
    a(f"v_lshlrev_b32 v{t0}, 1, v{t0}")
    a(f"v_lshrrev_b32 v{t1}, 1, v{cp}")
    a(f"v_xor_b32 v{t0}, v{t0}, v{t1}")
    a(f"v_lshlrev_b32 v{t0}, 4, v{t0}")
    a(f"v_and_b32 v{t1}, 1, v{cp}")
    a(f"v_lshl_or_b32 v{t0}, v{t1}, 3, v{t0}")
    a(f"v_lshl_add_u32 v{t1}, v{g}, 2, v{rp}")
    a(f"v_lshl_add_u32 v{t0}, v{t1}, 8, v{t0}")
    a(f"v_add_u32 v{vA0v}, s{sT1}, v{t0}")
    a(f"v_lshlrev_b32 v{t0}, 4, v{vLane}")
    a(f"s_lshl_b32 s{sT0}, s{sWq}, 11")
    a(f"v_add_u32 v{vOst}, s{sT0}, v{t0}")
    a(f"v_mov_b32 v{vPFd+3}, v{t0}")
    a(f"v_and_b32 v{t0}, 1, v{g}")
    a(f"v_cmp_eq_u32 s[54:55], 1, v{t0}")
    a("s_lshl_b32 s7, s7, 1")
    a("s_add_u32 s7, s7, s96")
    a("s_lshl_b32 s9, s8, 5")
    a("s_add_u32 s9, s9, s7")
    a("s_lshl_b32 s10, s9, 15")
    a("s_lshl_b32 s9, s9, 17")
    a(f"s_add_u32 s{sK}, s14, s9")
    a(f"s_addc_u32 s{sK+1}, s15, 0")
    a(f"s_mov_b32 s{sK+2}, 131072")
    a(f"s_mov_b32 s{sK+3}, 0x00020000")
    a(f"s_add_u32 s{sV}, s16, s9")
    a(f"s_addc_u32 s{sV+1}, s17, 0")
    a(f"s_mov_b32 s{sV+2}, 131072")
    a(f"s_mov_b32 s{sV+3}, 0x00020000")
    a(f"s_add_u32 s{sWO}, s94, s10")
    a(f"s_addc_u32 s{sWO+1}, s95, 0")
    a(f"s_mov_b32 s{sWO+2}, 32768")
    a(f"s_mov_b32 s{sWO+3}, 0x00020000")
    a("s_lshl_b32 s9, s6, 3")
    a("s_add_u32 s9, s9, s8")
    a("s_lshl_b32 s9, s9, 7")
    a("s_lshl_b32 s10, s7, 2")
    a("s_add_u32 s9, s9, s10")
    a("s_mul_i32 s9, s9, 7168")
    a(f"s_add_u32 s{sO}, s52, s9")
    a(f"s_addc_u32 s{sO+1}, s53, 0")
    a(f"s_mov_b32 s{sO+2}, 28672")
    a(f"s_mov_b32 s{sO+3}, 0x00020000")
    a(f"s_mov_b32 s{sSlotR}, 0")
    a(f"s_mov_b32 s{sSlotW}, 131072")
    a(f"s_mov_b32 s{sKVoff}, 32768")
    for i in range(64):
        a(f"v_mov_b32 v{ACC+i}, 0")

    def q_rd_x(m):
        xb = m & 1
        for ks in range(2):
            for nt in range(2):
                a(f"ds_read_b128 {vr(XB[xb]+(ks*2+nt)*4,4)}, v{vXa+ks} offset:{(m&1)*16384+nt*2048}")
    def q_rd(buf, mt, q):
        for hh in range(2):
            a(f"ds_read_b64_tr_b16 {vr(QB[buf]+mt*4+hh*2,2)}, v{vAd+mt} offset:{q*16384+hh*2048}")
    def q_mm(buf, mt, xb, ks):
        for nt in range(2):
            a(f"v_mfma_f32_16x16x32_bf16 {vr(acc(mt,nt),4)}, {vr(QB[buf]+mt*4,4)}, {vr(XB[xb]+(ks*2+nt)*4,4)}, {vr(acc(mt,nt),4)}")

    stamp(a, 1)
    a(f"s_waitcnt vmcnt({vm.need(('x',0),('wq',0))})")
    a("s_barrier")
    q_rd_x(0)
    for mt in range(8):
        q_rd(0, mt, 0)

    kvq = kv_pieces(0) + kv_pieces(1)
    kv_sched = {}
    nit = 29 - KV_START
    for idx, p in enumerate(kvq):
        it = KV_START + (idx * nit) // len(kvq)
        kv_sched.setdefault(it, []).append(p)
    kv_sched.setdefault(29, []).extend(kv_pieces(2))
    kv_sched.setdefault(31, []).extend(kv_pieces(3))

    def q_iter(cn, emit=True):
        buf = cn & 1
        m = cn >> 1
        xb = m & 1
        has_next = cn < 31
        needs = []
        if has_next: needs.append(("wq", cn + 1))
        if cn % 2 == 1 and m + 1 <= 15: needs.append(("x", m + 1))
        w = vm.need(*needs) if needs else None
        if w is not None:
            a(f"s_waitcnt vmcnt({w}) lgkmcnt(0)")
        else:
            a("s_waitcnt lgkmcnt(0)")
        a("s_barrier")
        pieces = []
        if cn % 2 == 0 and m + 2 <= 15: pieces += x_pieces(m + 2)
        if cn + 4 <= 31: pieces += wq_pieces(cn + 4)
        pieces += kv_sched.get(cn, [])
        if cn % 2 == 1 and m + 1 <= 15:
            q_rd_x(m + 1)
        slots = {}
        for i, p in enumerate(pieces):
            slots.setdefault((i * 8) // max(len(pieces), 1), []).append(p)
        for mt in range(8):
            if has_next:
                q_rd(buf ^ 1, mt, (cn + 1) & 3)
            q_mm(buf, mt, xb, cn & 1)
            for p in slots.get(mt, []):
                p()
        return w

    ngrp = KV_START // 4
    a(f"s_mov_b32 s{sCnt}, 0")
    a.lab("L_qp_loop")
    ws0 = [q_iter(cn) for cn in range(4)]
    a(f"s_add_u32 s{sCnt}, s{sCnt}, 1")
    a(f"s_cmp_lt_u32 s{sCnt}, {ngrp}")
    a("s_cbranch_scc1 L_qp_loop")
    save = a.l
    for gI in range(1, ngrp):
        a.l = []
        wsg = [q_iter(gI * 4 + k) for k in range(4)]
        assert wsg == ws0, (wsg, ws0)
    a.l = save
    for cn in range(KV_START, 32):
        q_iter(cn)

    stamp(a, 2)
    a("s_nop 7")
    a("s_mov_b64 vcc, s[54:55]")
    for u in range(4):
        for nt in range(2):
            X, Y = acc(2*u, nt), acc(2*u+1, nt)
            a(f"v_cvt_pk_bf16_f32 v{vT}, v{X}, v{X+1}")
            a(f"v_cvt_pk_bf16_f32 v{vT+1}, v{X+2}, v{X+3}")
            a(f"v_cvt_pk_bf16_f32 v{vT+2}, v{Y}, v{Y+1}")
            a(f"v_cvt_pk_bf16_f32 v{vT+3}, v{Y+2}, v{Y+3}")
            q = qf(u, nt)
            a(f"v_cndmask_b32 v{q}, v{vT}, v{vT+2}, vcc")
            a(f"v_cndmask_b32 v{q+1}, v{vT+1}, v{vT+3}, vcc")
            a(f"v_cndmask_b32 v{q+2}, v{vT+2}, v{vT}, vcc")
            a(f"v_cndmask_b32 v{q+3}, v{vT+3}, v{vT+1}, vcc")
    for i in range(64):
        a(f"v_mov_b32 v{ACC+i}, 0")
    for nt in range(2):
        a(f"v_mov_b32 v{vM+nt}, 0xff800000")
        a(f"v_mov_b32 v{vL+nt}, 0")
    assert vm.need(("kv", 0)) >= 12 and vm.need(("kv", 1)) >= 8

    def adv_slot(s):
        a(f"s_add_u32 s{s}, s{s}, 32768")
        a(f"s_cmp_ge_u32 s{s}, 163840")
        a(f"s_cselect_b32 s{s}, 0, s{s}")

    def dma_kv_pieces(srd, advance):
        out = []
        for i in range(4):
            def p(i=i):
                a(f"s_add_u32 m0, s{sSlotW}, s{sM0kv}")
                a("s_nop 0")
                a(f"buffer_load_dwordx4 v{vKVd+(i&1)}, {sr(srd,4)}, s{sKVoff} offen offset:{i*1024} {KVF} lds")
                if i == 3:
                    if advance:
                        a(f"s_add_u32 s{sKVoff}, s{sKVoff}, 16384")
                    adv_slot(sSlotW)
            out.append(p)
        return out

    a(f"s_mov_b32 s{sCnt}, 0")
    a.lab("L_at_loop")
    a("s_waitcnt vmcnt(12)")
    a("s_barrier")
    a(f"v_add_u32 v{vAd}, s{sSlotR}, v{vA0k}")
    for ks in range(1, 4):
        a(f"v_xor_b32 v{vAd+ks}, {ks<<6}, v{vAd}")
    adv_slot(sSlotR)
    def rdk(f):
        t, ks = f >> 2, f & 3
        a(f"ds_read_b128 {vr(FR+f*4,4)}, v{vAd+ks} offset:{t*4096}")
    def mmk(f):
        t, ks = f >> 2, f & 3
        for nt in range(2):
            cin = "0" if ks == 0 else vr(ss(t,nt),4)
            a(f"v_mfma_f32_16x16x32_bf16 {vr(ss(t,nt),4)}, {vr(FR+f*4,4)}, {vr(qf(ks,nt),4)}, {cin}")
    pk = dma_kv_pieces(sK, False)
    AHK = 8
    for f in range(AHK):
        rdk(f)
    for f in range(16):
        issued = min(f + AHK, 16)
        a(f"s_waitcnt lgkmcnt({issued-(f+1)})")
        if f + AHK < 16:
            rdk(f + AHK)
        mmk(f)
        if f % 4 == 1:
            pk[f // 4]()
    a("s_waitcnt vmcnt(12)")
    a("s_barrier")
    a(f"v_add_u32 v{vAd}, s{sSlotR}, v{vA0v}")
    for T in range(1, 8):
        a(f"v_xor_b32 v{vAd+T}, {T<<5}, v{vAd}")
    adv_slot(sSlotR)
    def rdv(f):
        v, T = f >> 3, f & 7
        for hh in range(2):
            a(f"ds_read_b64_tr_b16 {vr(FR+f*4+hh*2,2)}, v{vAd+T} offset:{v*8192+hh*4096}")
    AH = 6
    for f in range(AH):
        rdv(f)
    pv = dma_kv_pieces(sV, True)
    for nt in range(2):
        vals = [ss(t, nt) + r for t in range(4) for r in range(4)]
        mx = vT
        a(f"v_max3_f32 v{mx}, v{vals[0]}, v{vals[1]}, v{vals[2]}")
        for i in range(3, 15, 2):
            a(f"v_max3_f32 v{mx}, v{mx}, v{vals[i]}, v{vals[i+1]}")
        a(f"v_max_f32 v{mx}, v{mx}, v{vals[15]}")
        a(f"v_mov_b32 v{vT+1}, v{mx}")
        a("s_nop 1")
        a(f"v_permlane32_swap_b32 v{mx}, v{vT+1}")
        a("s_nop 1")
        a(f"v_max_f32 v{mx}, v{mx}, v{vT+1}")
        a(f"v_mov_b32 v{vT+1}, v{mx}")
        a("s_nop 1")
        a(f"v_permlane16_swap_b32 v{mx}, v{vT+1}")
        a("s_nop 1")
        a(f"v_max_f32 v{mx}, v{mx}, v{vT+1}")
        a(f"v_mul_f32 v{mx}, s{sC}, v{mx}")
        a(f"v_max_f32 v{mx}, v{mx}, v{vM+nt}")
        al = vT + 2
        a(f"v_sub_f32 v{al}, v{vM+nt}, v{mx}")
        a(f"v_exp_f32 v{al}, v{al}")
        a(f"v_mov_b32 v{vM+nt}, v{mx}")
        for x in vals:
            a(f"v_fma_f32 v{x}, v{x}, s{sC}, -v{mx}")
        pv[nt*2]()
        for x in vals:
            a(f"v_exp_f32 v{x}, v{x}")
        a(f"v_mul_f32 v{vL+nt}, v{vL+nt}, v{al}")
        a(f"v_add_f32 v{vT+3}, v{vals[0]}, v{vals[1]}")
        a(f"v_add_f32 v{vT+4}, v{vals[2]}, v{vals[3]}")
        for i in range(4, 16, 2):
            a(f"v_add_f32 v{vT+3}, v{vT+3}, v{vals[i]}")
            a(f"v_add_f32 v{vT+4}, v{vT+4}, v{vals[i+1]}")
        a(f"v_add_f32 v{vT+3}, v{vT+3}, v{vT+4}")
        a(f"v_add_f32 v{vL+nt}, v{vL+nt}, v{vT+3}")
        for v in range(2):
            p = pf(v, nt)
            for hh in range(2):
                s0 = ss(2*v+hh, nt)
                a(f"v_cvt_pk_bf16_f32 v{p+hh*2}, v{s0}, v{s0+1}")
                a(f"v_cvt_pk_bf16_f32 v{p+hh*2+1}, v{s0+2}, v{s0+3}")
        pv[nt*2+1]()
        for T in range(8):
            for r in range(4):
                x = acc(T, nt) + r
                a(f"v_mul_f32 v{x}, v{x}, v{al}")
    a("s_nop 1")
    for f in range(16):
        issued = min(f + AH, 16)
        a(f"s_waitcnt lgkmcnt({(issued-(f+1))*2})")
        if f + AH < 16:
            rdv(f + AH)
        v, T = f >> 3, f & 7
        for nt in range(2):
            a(f"v_mfma_f32_16x16x32_bf16 {vr(acc(T,nt),4)}, {vr(FR+f*4,4)}, {vr(pf(v,nt),4)}, {vr(acc(T,nt),4)}")
    a(f"s_add_u32 s{sCnt}, s{sCnt}, 1")
    a(f"s_cmp_lt_u32 s{sCnt}, 8")
    a("s_cbranch_scc1 L_at_loop")

    stamp(a, 3)
    if PF_WO:
        a(f"s_lshl_b32 s{sT0}, s{sWq}, 13")
        for i in range(8):
            a(f"buffer_load_dwordx3 {vr(vPFd,3)}, v{vPFd+3}, {sr(sWO,4)}, s{sT0} offen")
            a(f"s_add_u32 s{sT0}, s{sT0}, 1024")
    a("s_nop 7")
    a("s_nop 1")
    for nt in range(2):
        l = vL + nt
        a(f"v_mov_b32 v{vT+1}, v{l}")
        a("s_nop 1")
        a(f"v_permlane32_swap_b32 v{l}, v{vT+1}")
        a("s_nop 1")
        a(f"v_add_f32 v{l}, v{l}, v{vT+1}")
        a(f"v_mov_b32 v{vT+1}, v{l}")
        a("s_nop 1")
        a(f"v_permlane16_swap_b32 v{l}, v{vT+1}")
        a("s_nop 1")
        a(f"v_add_f32 v{l}, v{l}, v{vT+1}")
        a(f"v_rcp_f32 v{l}, v{l}")
    a("s_nop 0")
    a(f"s_mov_b32 s{sT1}, 7168")
    a(f"s_mov_b32 s{sT2}, 14336")
    a(f"s_mov_b32 s{sT3}, 21504")
    for nt in range(2):
        if nt == 1:
            a(f"s_cmp_eq_u32 s{sWq}, 3")
            a("s_cbranch_scc1 L_attn_fin")
        for tp in range(4):
            o = FR + (nt * 4 + tp) * 4
            for hh in range(2):
                x = acc(2*tp+hh, nt)
                for r in range(4):
                    a(f"v_mul_f32 v{x+r}, v{x+r}, v{vL+nt}")
                a(f"v_cvt_pk_bf16_f32 v{o+hh*2}, v{x}, v{x+1}")
                a(f"v_cvt_pk_bf16_f32 v{o+hh*2+1}, v{x+2}, v{x+3}")
            so = "0" if tp == 0 else f"s{sT0+tp}"
            a(f"buffer_store_dwordx4 {vr(o,4)}, v{vOst}, {sr(sO,4)}, {so} offen offset:{nt*1024}")
    a.lab("L_attn_fin")
    if DIAG:
        a("s_waitcnt vmcnt(0)")
        stamp(a, 4)
        diag_dump(a, 52, sW, 128 << 20, 3)
    a.lab("L_attn_end")
    a("s_endpgm")

def gen_oproj(a):
    NST = OP_DEPTH
    assert 32 % NST == 0
    sW = 3
    sOo, sWO, sOUT = 20, 24, 28
    sKo, sKw = 32, 33
    sPo, sPw = 34, 35
    sCnt = 36
    sBig = 39
    sRing = 40
    vLane = 1
    vO0, vO1 = 2, 3
    vWd = 4
    vRd = 8
    g, c = 12, 13
    vT = 14
    ST = 32
    AF = ST + NST * 28
    def of(st, nt): return ST + st * 28 + nt * 4
    def acc(i, nt): return (nt * 4 + i) * 4
    RING = NST * 4096

    a.lab("oproj_kernel")
    a("s_cmp_ge_u32 s2, 256")
    a("s_cbranch_scc1 L_op_end")
    stamp(a, 0)
    if DIAG: a("s_memrealtime s[78:79]")
    a("s_and_b32 s4, s2, 7")
    a("s_lshr_b32 s5, s2, 3")
    a("s_lshr_b32 s6, s4, 2")
    a("s_bfe_u32 s7, s4, 0x10001")
    a("s_lshl_b32 s7, s7, 2")
    a("s_and_b32 s8, s5, 3")
    a("s_add_u32 s7, s7, s8")
    a("s_and_b32 s8, s4, 1")
    a("s_lshl_b32 s8, s8, 3")
    a("s_lshr_b32 s9, s5, 2")
    a("s_add_u32 s8, s8, s9")
    a("s_mul_i32 s9, s6, 40")
    a("s_add_u32 s10, s0, s9")
    a("s_addc_u32 s11, s1, 0")
    a("s_load_dwordx2 s[12:13], s[10:11], 32")
    a("s_load_dwordx2 s[14:15], s[0:1], 80")
    a("s_load_dwordx2 s[16:17], s[0:1], 96")
    a(f"v_and_b32 v{vLane}, 63, v0")
    a("v_lshrrev_b32 v8, 6, v0")
    a("s_nop 0")
    a(f"v_readfirstlane_b32 s{sW}, v8")
    a(f"s_mov_b32 s{sBig}, 0x7f000000")
    a(f"v_lshrrev_b32 v{g}, 4, v{vLane}")
    a(f"v_and_b32 v{c}, 15, v{vLane}")
    a(f"v_lshlrev_b32 v{vO0}, 4, v{vLane}")
    a(f"v_add_u32 v{vO1}, 4096, v{vO0}")
    a(f"s_mul_i32 s{sRing}, s{sW}, {RING}")
    t0, t1, t2 = 20, 21, 22
    a(f"v_lshrrev_b32 v{t0}, 3, v{vLane}")
    a(f"v_bfe_u32 v{t1}, v{vLane}, 4, 2")
    a(f"v_lshlrev_b32 v{t1}, 1, v{t1}")
    a(f"v_and_b32 v{t2}, 7, v{vLane}")
    a(f"v_xor_b32 v{t1}, v{t1}, v{t2}")
    a(f"v_lshlrev_b32 v{t1}, 4, v{t1}")
    a(f"v_lshl_add_u32 v{vWd}, v{t0}, 11, v{t1}")
    for i in range(1, 4):
        a(f"v_add_u32 v{vWd+i}, {i*(8*2048-1024)}, v{vWd}")
    rp, cp = 23, 24
    a(f"v_bfe_u32 v{rp}, v{vLane}, 2, 2")
    a(f"v_and_b32 v{cp}, 3, v{vLane}")
    a(f"v_and_b32 v{t0}, 1, v{g}")
    a(f"v_lshlrev_b32 v{t0}, 1, v{t0}")
    a(f"v_lshrrev_b32 v{t1}, 1, v{rp}")
    a(f"v_add_u32 v{t0}, v{t0}, v{t1}")
    a(f"v_lshlrev_b32 v{t0}, 1, v{t0}")
    a(f"v_lshrrev_b32 v{t1}, 1, v{cp}")
    a(f"v_xor_b32 v{t0}, v{t0}, v{t1}")
    a(f"v_lshlrev_b32 v{t0}, 4, v{t0}")
    a(f"v_and_b32 v{t1}, 1, v{cp}")
    a(f"v_lshl_or_b32 v{t0}, v{t1}, 3, v{t0}")
    a(f"v_lshl_add_u32 v{t1}, v{g}, 2, v{rp}")
    a(f"v_lshl_add_u32 v{t0}, v{t1}, 7, v{t0}")
    a(f"v_add_u32 v{vRd}, s{sRing}, v{t0}")
    for i in range(1, 4):
        a(f"v_xor_b32 v{vRd+i}, {i<<5}, v{vRd}")
    for i in range(112):
        a(f"v_accvgpr_write_b32 a{i}, 0")
    a("s_waitcnt lgkmcnt(0)")
    a("s_lshl_b32 s9, s6, 3")
    a("s_add_u32 s9, s9, s7")
    a("s_mul_i32 s9, s9, 917504")
    a(f"s_add_u32 s{sOo}, s16, s9")
    a(f"s_addc_u32 s{sOo+1}, s17, 0")
    a(f"s_mov_b32 s{sOo+2}, 917504")
    a(f"s_mov_b32 s{sOo+3}, 0x00020000")
    a("s_lshl_b32 s9, s8, 7")
    a(f"s_add_u32 s{sWO}, s12, s9")
    a(f"s_addc_u32 s{sWO+1}, s13, 0")
    a(f"s_sub_u32 s{sWO+2}, 8388608, s9")
    a(f"s_mov_b32 s{sWO+3}, 0x00020000")
    a("s_mul_i32 s10, s7, 458752")
    a("s_lshl_b32 s11, s6, 11")
    a("s_add_u32 s10, s10, s11")
    a("s_add_u32 s10, s10, s9")
    a(f"s_add_u32 s{sOUT}, s14, s10")
    a(f"s_addc_u32 s{sOUT+1}, s15, 0")
    a(f"s_mov_b32 s{sOUT+2}, {111*4096+128}")
    a(f"s_mov_b32 s{sOUT+3}, 0x00020000")
    a(f"s_mul_i32 s{sKo}, s{sW}, {32*7168}")
    a(f"s_lshl_b32 s{sKw}, s{sW}, 21")

    def ld_wo(st, so):
        a(f"s_add_u32 m0, s{sRing}, {st*4096}")
        a("s_nop 0")
        for i in range(4):
            a(f"buffer_load_dwordx4 v{vWd+i}, {sr(sWO,4)}, s{so} offen offset:{i*1024} lds")
    def ld_o(st, so):
        for nt in range(7):
            v = vO0 if nt < 4 else vO1
            a(f"buffer_load_dwordx4 {vr(of(st,nt),4)}, v{v}, {sr(sOo,4)}, s{so} offen offset:{(nt&3)*1024}")
    def rd_af(st, buf):
        for i in range(4):
            for hh in range(2):
                a(f"ds_read_b64_tr_b16 {vr(AF+buf*16+i*4+hh*2,2)}, v{vRd+i} offset:{st*4096+hh*2048}")
    for st in range(NST):
        ld_wo(st, sKw)
        ld_o(st, sKo)
        a(f"s_add_u32 s{sKw}, s{sKw}, 65536")
        a(f"s_add_u32 s{sKo}, s{sKo}, 7168")
    stamp(a, 1)
    a(f"s_waitcnt vmcnt({(NST-1)*11+7})")
    rd_af(0, 0)
    a(f"s_mov_b32 s{sCnt}, 0")
    a.lab("L_op_loop")
    for st in range(NST):
        buf = st & 1
        nst = (st + 1) % NST
        a(f"s_cmp_lt_u32 s{sCnt}, {32//NST - 1}")
        a(f"s_cselect_b32 s{sPw}, s{sKw}, s{sBig}")
        a(f"s_cselect_b32 s{sPo}, s{sKo}, s{sBig}")
        a(f"s_waitcnt vmcnt({7+(NST-2)*11}) lgkmcnt(0)")
        ld_wo(st, sPw)
        rd_af(nst, buf ^ 1)
        for nt in range(7):
            for i in range(4):
                a(f"v_mfma_f32_16x16x32_bf16 {ar(acc(i,nt),4)}, {vr(AF+buf*16+i*4,4)}, {vr(of(st,nt),4)}, {ar(acc(i,nt),4)}")
        ld_o(st, sPo)
        a(f"s_add_u32 s{sKw}, s{sKw}, 65536")
        a(f"s_add_u32 s{sKo}, s{sKo}, 7168")
    a(f"s_add_u32 s{sCnt}, s{sCnt}, 1")
    a(f"s_cmp_lt_u32 s{sCnt}, {32//NST}")
    a("s_cbranch_scc1 L_op_loop")
    stamp(a, 2)
    a("s_waitcnt vmcnt(0) lgkmcnt(0)")
    a("s_barrier")
    a(f"s_mul_i32 s4, s{sW}, 28672")
    a(f"v_add_u32 v{vT}, s4, v{vO0}")
    for nt in range(7):
        for i in range(4):
            a(f"ds_write_b128 v{vT}, {ar(acc(i,nt),4)} offset:{(nt*4+i)*1024}")
    a("s_waitcnt lgkmcnt(0)")
    a("s_barrier")
    a(f"s_lshl_b32 s4, s{sW}, 13")
    a(f"v_add_u32 v{vT}, s4, v{vO0}")
    a(f"v_add_u32 v{vT+1}, 57344, v{vT}")
    a(f"v_lshlrev_b32 v{vT+2}, 12, v{c}")
    a(f"v_lshl_add_u32 v{vT+2}, v{g}, 3, v{vT+2}")
    a(f"s_lshl_b32 s4, s{sW}, 17")
    a(f"v_add_u32 v{vT+2}, s4, v{vT+2}")
    a(f"s_mov_b32 s5, 65536")
    for n2 in range(2):
        if n2 == 1:
            a(f"s_cmp_eq_u32 s{sW}, 3")
            a("s_cbranch_scc1 L_op_fin")
        R = 32
        for i in range(4):
            for pw in range(4):
                vb = vT if pw < 2 else vT + 1
                a(f"ds_read_b128 {vr(R+(i*4+pw)*4,4)}, v{vb} offset:{(pw&1)*28672+n2*4096+i*1024}")
        a("s_waitcnt lgkmcnt(0)")
        O = 100 + n2 * 8
        for i in range(4):
            for r in range(4):
                b0 = R + (i*4)*4 + r
                a(f"v_add_f32 v{b0}, v{b0}, v{b0+4}")
                a(f"v_add_f32 v{b0+8}, v{b0+8}, v{b0+12}")
                a(f"v_add_f32 v{b0}, v{b0}, v{b0+8}")
            b0 = R + i * 16
            a(f"v_cvt_pk_bf16_f32 v{O+i*2}, v{b0}, v{b0+1}")
            a(f"v_cvt_pk_bf16_f32 v{O+i*2+1}, v{b0+2}, v{b0+3}")
        so = "0" if n2 == 0 else "s5"
        for i in range(4):
            a(f"buffer_store_dwordx2 {vr(O+i*2,2)}, v{vT+2}, {sr(sOUT,4)}, {so} offen offset:{i*32}")
    a.lab("L_op_fin")
    if DIAG:
        a("s_waitcnt vmcnt(0)")
        stamp(a, 3)
        diag_dump(a, 16, sW, 129 << 20)
    a.lab("L_op_end")
    a("s_endpgm")
    return AF + 32


HEADER = open("cdna_kernels/" + NAME + ".s.ref").read().split("; Override launch")[0]

def kd(name, vgpr, accum, sgpr=102):
    return f""".amdhsa_kernel {name}
  .amdhsa_next_free_vgpr {vgpr}
  .amdhsa_next_free_sgpr {sgpr}
  .amdhsa_accum_offset {accum}
  .amdhsa_group_segment_fixed_size 0
  .amdhsa_kernarg_size 104
  .amdhsa_user_sgpr_count 2
  .amdhsa_user_sgpr_kernarg_segment_ptr 1
  .amdhsa_system_sgpr_workgroup_id_x 1
.end_amdhsa_kernel
"""

def main():
    out = HEADER
    out += "; @launch kernel=attn_kernel grid=(256,1,1) block=(512,1,1) lds=163840\n"
    out += "; @launch kernel=oproj_kernel grid=(256,1,1) block=(256,1,1) lds=114688\n"
    out += '.amdgcn_target "amdgcn-amd-amdhsa--gfx950"\n.text\n'
    for name, fn in (("attn_kernel", gen_attn), ("oproj_kernel", gen_oproj)):
        a = A()
        fn(a)
        out += f".globl {name}\n.p2align 8\n.type {name},@function\n" + a.text()
    out += '.section .rodata,"a"\n.p2align 6\n'
    out += kd("attn_kernel", 256, 256)
    out += ".p2align 6\n"
    out += kd("oproj_kernel", 368, 256)
    path = sys.argv[1] if len(sys.argv) > 1 else "cdna_kernels/" + NAME + ".s"
    open(path, "w").write(out)

if __name__ == "__main__":
    main()
```

```python
import sys, os, struct
DIAG = int(os.environ.get("DIAG", "0"))
NAME = "concat_heads__mha_block_cached__mha_block_cached__near_ridge"
PF_WQ = int(os.environ.get("PF_WQ", "1"))
PF_WO = int(os.environ.get("PF_WO", "1"))
OP_DEPTH = int(os.environ.get("OP_DEPTH", "4"))
PRIO = int(os.environ.get("PRIO", "1"))

class A:
    def __init__(self):
        self.l = []
    def __call__(self, s):
        self.l.append("    " + s)
    def lab(self, s):
        self.l.append(s + ":")
    def text(self):
        return "\n".join(self.l) + "\n"

def vr(a, n):
    return f"v[{a}:{a+n-1}]" if n > 1 else f"v{a}"
def ar(a, n):
    return f"a[{a}:{a+n-1}]" if n > 1 else f"a{a}"
def sr(a, n):
    return f"s[{a}:{a+n-1}]" if n > 1 else f"s{a}"

SCALE_C = 0.08838834764831845 * 1.4426950408889634
def f32bits(x):
    return struct.unpack("<I", struct.pack("<f", x))[0]

def stamp(a, i):
    if DIAG:
        a("s_waitcnt lgkmcnt(0)")
        a(f"s_memtime s[{60+2*i}:{61+2*i}]")
        a("s_waitcnt lgkmcnt(0)")
def diag_dump(a, wsreg, sW, region, lg=2):
    if not DIAG: return
    a("s_memrealtime s[80:81]")
    a("s_getreg_b32 s82, hwreg(HW_REG_HW_ID)")
    a("s_getreg_b32 s83, hwreg(HW_REG_XCC_ID)")
    a("s_waitcnt lgkmcnt(0)")
    a(f"s_lshl_b32 s84, s2, {lg}")
    a(f"s_add_u32 s84, s84, s{sW}")
    a(f"s_lshl_b32 s84, s84, 7")
    a(f"s_add_u32 s84, s84, {region}")
    a(f"s_add_u32 s88, s{wsreg}, s84")
    a(f"s_addc_u32 s89, s{wsreg+1}, 0")
    a("s_mov_b32 s90, 128")
    a("s_mov_b32 s91, 0x00020000")
    a("v_mov_b32 v1, 0")
    for i in range(24):
        a(f"v_mov_b32 v2, s{60+i}")
        a(f"buffer_store_dword v2, v1, s[88:91], 0 offen offset:{i*4}")
        a("s_waitcnt vmcnt(0)")

class VM:
    def __init__(self):
        self.ops = []
    def issue(self, tag, n):
        self.ops += [tag] * n
    def need(self, *tags):
        last = max(i for i, t in enumerate(self.ops) if t in tags)
        for t in tags:
            assert t in self.ops, t
        return len(self.ops) - 1 - last

KVF = os.environ.get("KVF", "")
WQF = os.environ.get("WQF", "")
KV_START = int(os.environ.get("KV_START", "20"))

def gen_attn(a):
    PK = int(os.environ.get("PK", "1"))
    STAG = int(os.environ.get("STAG", "0"))
    sW = 3
    sWq = 99
    sE = 96
    sX, sWQ, sK, sV, sO, sWO = 20, 24, 28, 32, 36, 56
    sSlotR, sSlotW = 40, 41
    sM0kv = 42
    sWQoff = 43
    sXoff = 44
    sKVoff = 45
    sCnt = 46
    sC = 47
    sT0, sT1, sT2, sT3 = 48, 49, 50, 51
    sM0q = 92
    sM0x = 93
    vLane = 1
    vWQd = 2
    vXd = 4
    vKd = 6
    vVd = 10
    vA0k, vA0v = 11, 12
    vOst = 13
    vAd = 14
    vAv = 22
    vM = 26
    vLp = 28
    vT = 30
    vPFd = 44
    vP = 48
    ACC = 64
    FR = 128
    QF = 192
    SS = 224
    QB = [128, 160]
    XB = [192, 208]
    WQ0, X0 = 65536, 131072
    MF = "v_mfma_f32_32x32x16_bf16"

    def acc(T): return ACC + T * 16
    def ss(t): return SS + t * 16
    def pf(t, s_): return vP + (t * 2 + s_) * 4

    a.lab("attn_kernel")
    a("s_cmp_ge_u32 s2, 256")
    a("s_cbranch_scc1 L_attn_end")
    stamp(a, 0)
    if DIAG: a("s_memrealtime s[78:79]")
    a("s_and_b32 s4, s2, 7")
    a("s_lshr_b32 s5, s2, 3")
    a("s_lshr_b32 s6, s4, 2")
    a("s_and_b32 s7, s4, 3")
    a("s_lshl_b32 s7, s7, 2")
    a("s_and_b32 s8, s5, 3")
    a("s_add_u32 s7, s7, s8")
    a("s_lshr_b32 s8, s5, 2")
    a("s_mul_i32 s9, s6, 40")
    a("s_add_u32 s10, s0, s9")
    a("s_addc_u32 s11, s1, 0")
    a("s_load_dwordx8 s[12:19], s[10:11], 0")
    a("s_load_dwordx2 s[94:95], s[10:11], 32")
    a("s_load_dwordx2 s[52:53], s[0:1], 96")
    a(f"v_and_b32 v{vLane}, 63, v0")
    a("v_lshrrev_b32 v2, 6, v0")
    a("s_nop 0")
    a(f"v_readfirstlane_b32 s{sW}, v2")
    a(f"s_mov_b32 s{sC}, 0x{f32bits(SCALE_C):08x}")
    a(f"s_mov_b32 s100, 0x{f32bits(SCALE_C):08x}")
    a(f"s_mov_b32 s101, 0x{f32bits(SCALE_C):08x}")
    g, c, rp, cp, hh_, m_ = 36, 37, 38, 39, 42, 43
    t0, t1 = 40, 41
    a(f"v_lshrrev_b32 v{g}, 4, v{vLane}")
    a(f"v_and_b32 v{c}, 15, v{vLane}")
    a(f"v_bfe_u32 v{rp}, v{vLane}, 2, 2")
    a(f"v_and_b32 v{cp}, 3, v{vLane}")
    a(f"v_lshrrev_b32 v{hh_}, 5, v{vLane}")
    a(f"v_and_b32 v{m_}, 31, v{vLane}")
    a(f"s_and_b32 s{sWq}, s{sW}, 3")
    a(f"s_lshr_b32 s{sE}, s{sW}, 2")
    a(f"s_lshl_b32 s{sM0kv}, s{sW}, 12")
    a(f"s_lshl_b32 s{sM0q}, s{sW}, 11")
    a(f"s_add_u32 s{sM0x}, s{sM0q}, {X0}")
    a(f"s_add_u32 s{sM0q}, s{sM0q}, {WQ0}")
    a(f"v_lshlrev_b32 v{t1}, 2, v{hh_}")
    a(f"v_xor_b32 v{t1}, v{t1}, v{c}")
    a(f"v_lshlrev_b32 v{t1}, 4, v{t1}")
    a(f"v_lshl_add_u32 v{t1}, v{hh_}, 13, v{t1}")
    a(f"v_and_b32 v{t0}, 1, v{g}")
    a(f"v_lshl_add_u32 v{t1}, v{t0}, 8, v{t1}")
    a(f"s_lshl_b32 s{sT0}, s{sW}, 15")
    a(f"v_add_u32 v{vWQd}, s{sT0}, v{t1}")
    a(f"v_xor_b32 v{t1}, 128, v{vWQd}")
    a(f"v_add_u32 v{vWQd+1}, {2*8192-1024}, v{t1}")
    a(f"v_and_b32 v{t1}, 7, v{vLane}")
    a(f"v_xor_b32 v{t0}, v{g}, v{t1}")
    a(f"v_lshlrev_b32 v{t0}, 4, v{t0}")
    a(f"v_lshrrev_b32 v{t1}, 3, v{vLane}")
    a(f"v_lshl_add_u32 v{t0}, v{t1}, 11, v{t0}")
    a(f"v_add_u32 v{vXd}, s{sT0}, v{t0}")
    a(f"v_xor_b32 v{t0}, 64, v{vXd}")
    a(f"v_add_u32 v{vXd+1}, {8*2048-1024}, v{t0}")
    a("s_waitcnt lgkmcnt(0)")
    a("s_mul_i32 s9, s8, 229376")
    a(f"s_add_u32 s{sX}, s12, s9")
    a(f"s_addc_u32 s{sX+1}, s13, 0")
    a(f"s_mov_b32 s{sX+2}, 229376")
    a(f"s_mov_b32 s{sX+3}, 0x00020000")
    a("s_lshl_b32 s9, s7, 9")
    a(f"s_add_u32 s{sWQ}, s18, s9")
    a(f"s_addc_u32 s{sWQ+1}, s19, 0")
    a(f"s_sub_u32 s{sWQ+2}, 8388608, s9")
    a(f"s_mov_b32 s{sWQ+3}, 0x00020000")
    a(f"s_mov_b32 s{sWQoff}, 0")
    a(f"s_mov_b32 s{sXoff}, 0")

    vm = VM()
    XF = os.environ.get("XF", "")
    def wq_pieces(cn):
        q = cn & 3
        def p0():
            a(f"s_add_u32 m0, s{sM0q}, {q*16384}")
            a("s_nop 0")
            a(f"buffer_load_dwordx4 v{vWQd}, {sr(sWQ,4)}, s{sWQoff} offen {WQF} lds")
            vm.issue(("wq", cn), 1)
        def p1():
            a(f"s_add_u32 m0, s{sM0q}, {q*16384}")
            a("s_nop 0")
            a(f"buffer_load_dwordx4 v{vWQd+1}, {sr(sWQ,4)}, s{sWQoff} offen offset:1024 {WQF} lds")
            if not os.environ.get("NOADV"): a(f"s_add_u32 s{sWQoff}, s{sWQoff}, {32*8192}")
            vm.issue(("wq", cn), 1)
        return [p0, p1]
    def x_pieces(m):
        q = m & 1
        def p0():
            a(f"s_add_u32 m0, s{sM0x}, {q*16384}")
            a("s_nop 0")
            a(f"buffer_load_dwordx4 v{vXd}, {sr(sX,4)}, s{sXoff} offen {XF} lds")
            vm.issue(("x", m), 1)
        def p1():
            a(f"s_add_u32 m0, s{sM0x}, {q*16384}")
            a("s_nop 0")
            a(f"buffer_load_dwordx4 v{vXd+1}, {sr(sX,4)}, s{sXoff} offen offset:1024 {XF} lds")
            if not os.environ.get("NOADV"): a(f"s_add_u32 s{sXoff}, s{sXoff}, 128")
            vm.issue(("x", m), 1)
        return [p0, p1]
    def kv_voff(isK, i):
        return vKd + i if isK else vVd
    def kv_pieces(n):
        isK = n % 2 == 0
        srd = sK if isK else sV
        out = []
        for i in range(4):
            def p(i=i):
                a(f"s_add_u32 m0, s{sM0kv}, {n*32768}")
                a(f"s_mov_b32 s{sT0}, {(n>>1)*16384}")
                a(f"buffer_load_dwordx4 v{kv_voff(isK,i)}, {sr(srd,4)}, s{sT0} offen offset:{i*1024} {KVF} lds")
                vm.issue(("kv", n), 1)
            out.append(p)
        return out

    for p in x_pieces(0) + wq_pieces(0) + wq_pieces(1) + x_pieces(1) + wq_pieces(2) + wq_pieces(3):
        p()

    a(f"v_bfe_u32 v{t0}, v{m_}, 1, 3")
    a(f"v_xor_b32 v{t0}, v{t0}, v{hh_}")
    a(f"v_lshlrev_b32 v{t0}, 4, v{t0}")
    a(f"v_lshl_add_u32 v{t0}, v{m_}, 7, v{t0}")
    a(f"s_lshl_b32 s{sT0}, s{sWq}, 12")
    a(f"s_add_u32 s{sT0}, s{sT0}, {X0}")
    a(f"v_add_u32 v{vAd+4}, s{sT0}, v{t0}")
    for k in range(1, 4):
        a(f"v_xor_b32 v{vAd+4+k}, {k<<5}, v{vAd+4}")
    a(f"v_and_b32 v{t0}, 1, v{g}")
    a(f"v_and_b32 v{t1}, 1, v{cp}")
    a(f"v_lshl_or_b32 v{t0}, v{t0}, 1, v{t1}")
    a(f"v_lshl_or_b32 v{t0}, v{rp}, 2, v{t0}")
    a(f"v_lshlrev_b32 v{t0}, 4, v{t0}")
    a(f"v_lshrrev_b32 v{t1}, 1, v{cp}")
    a(f"v_lshl_or_b32 v{t0}, v{t1}, 3, v{t0}")
    a(f"v_lshl_add_u32 v{t1}, v{hh_}, 3, v{rp}")
    a(f"v_lshl_add_u32 v{t0}, v{t1}, 9, v{t0}")
    a(f"s_lshl_b32 s{sT0}, s{sE}, 8")
    a(f"s_add_u32 s{sT0}, s{sT0}, {WQ0}")
    a(f"v_add_u32 v{vAd}, s{sT0}, v{t0}")
    for k in range(1, 4):
        a(f"v_xor_b32 v{vAd+k}, {k<<6}, v{vAd}")
    a(f"s_lshl_b32 s{sT0}, s{sWq}, 12")
    a(f"v_xor_b32 v{t0}, v{g}, v{c}")
    a(f"v_lshlrev_b32 v{t0}, 4, v{t0}")
    a(f"v_lshl_add_u32 v{t0}, v{g}, 8, v{t0}")
    a(f"v_add_u32 v{vKd}, s{sT0}, v{t0}")
    for i in range(1, 4):
        a(f"v_xor_b32 v{vKd+i}, {i<<6}, v{vKd}")
    a(f"v_lshlrev_b32 v{t0}, 2, v{g}")
    a(f"v_xor_b32 v{t0}, v{t0}, v{c}")
    a(f"v_lshlrev_b32 v{t0}, 4, v{t0}")
    a(f"v_lshl_add_u32 v{t0}, v{g}, 8, v{t0}")
    a(f"v_add_u32 v{vVd}, s{sT0}, v{t0}")
    a(f"s_lshl_b32 s{sT1}, s{sE}, 14")
    a(f"v_xor_b32 v{t0}, v{hh_}, v{c}")
    a(f"v_lshlrev_b32 v{t0}, 4, v{t0}")
    a(f"v_lshl_add_u32 v{t0}, v{m_}, 8, v{t0}")
    a(f"v_add_u32 v{vA0k}, s{sT1}, v{t0}")
    a(f"v_and_b32 v{t0}, 1, v{g}")
    a(f"v_lshrrev_b32 v{t1}, 1, v{cp}")
    a(f"v_lshl_or_b32 v{t0}, v{t0}, 1, v{t1}")
    a(f"v_lshl_or_b32 v{t0}, v{rp}, 2, v{t0}")
    a(f"v_lshlrev_b32 v{t0}, 4, v{t0}")
    a(f"v_and_b32 v{t1}, 1, v{cp}")
    a(f"v_lshl_or_b32 v{t0}, v{t1}, 3, v{t0}")
    a(f"v_lshl_add_u32 v{t1}, v{hh_}, 2, v{rp}")
    a(f"v_lshl_add_u32 v{t0}, v{t1}, 8, v{t0}")
    a(f"v_add_u32 v{vA0v}, s{sT1}, v{t0}")
    a(f"v_and_b32 v{t0}, 1, v{g}")
    a(f"v_lshlrev_b32 v{t0}, 10, v{t0}")
    a(f"v_lshl_add_u32 v{t0}, v{hh_}, 8, v{t0}")
    a(f"v_lshl_add_u32 v{t0}, v{c}, 4, v{t0}")
    a(f"s_lshl_b32 s{sT0}, s{sWq}, 11")
    a(f"v_add_u32 v{t0}, s{sT0}, v{t0}")
    a(f"v_mov_b32 v{t1}, 0x40000000")
    a(f"v_cmp_gt_u32 vcc, 7168, v{t0}")
    a("s_nop 1")
    a(f"v_cndmask_b32 v{vOst}, v{t1}, v{t0}, vcc")
    a(f"v_lshlrev_b32 v{vPFd+3}, 4, v{vLane}")
    a("s_lshl_b32 s7, s7, 1")
    a(f"s_add_u32 s7, s7, s{sE}")
    a("s_lshl_b32 s9, s8, 5")
    a("s_add_u32 s9, s9, s7")
    a("s_lshl_b32 s10, s9, 15")
    a("s_lshl_b32 s9, s9, 17")
    a(f"s_add_u32 s{sK}, s14, s9")
    a(f"s_addc_u32 s{sK+1}, s15, 0")
    a(f"s_mov_b32 s{sK+2}, 131072")
    a(f"s_mov_b32 s{sK+3}, 0x00020000")
    a(f"s_add_u32 s{sV}, s16, s9")
    a(f"s_addc_u32 s{sV+1}, s17, 0")
    a(f"s_mov_b32 s{sV+2}, 131072")
    a(f"s_mov_b32 s{sV+3}, 0x00020000")
    a(f"s_add_u32 s{sWO}, s94, s10")
    a(f"s_addc_u32 s{sWO+1}, s95, 0")
    a(f"s_mov_b32 s{sWO+2}, 32768")
    a(f"s_mov_b32 s{sWO+3}, 0x00020000")
    a("s_lshl_b32 s9, s6, 3")
    a("s_add_u32 s9, s9, s8")
    a("s_lshl_b32 s9, s9, 7")
    a("s_lshl_b32 s10, s7, 2")
    a("s_add_u32 s9, s9, s10")
    a("s_mul_i32 s9, s9, 7168")
    a(f"s_add_u32 s{sO}, s52, s9")
    a(f"s_addc_u32 s{sO+1}, s53, 0")
    a(f"s_mov_b32 s{sO+2}, 28672")
    a(f"s_mov_b32 s{sO+3}, 0x00020000")
    a(f"s_mov_b32 s{sSlotR}, 0")
    a(f"s_mov_b32 s{sSlotW}, 131072")
    a(f"s_mov_b32 s{sKVoff}, 32768")
    for i in range(64):
        a(f"v_mov_b32 v{ACC+i}, 0")

    def q_rd_x(m):
        xb = m & 1
        for k in range(4):
            a(f"ds_read_b128 {vr(XB[xb]+k*4,4)}, v{vAd+4+k} offset:{(m&1)*16384}")
    def q_rd(buf, f, q):
        ks, mt = f >> 2, f & 3
        for hh in range(2):
            a(f"ds_read_b64_tr_b16 {vr(QB[buf]+f*4+hh*2,2)}, v{vAd+mt} offset:{q*16384+ks*8192+hh*2048}")
    def q_mm(buf, f, xb, par):
        ks, mt = f >> 2, f & 3
        a(f"{MF} {vr(acc(mt),16)}, {vr(QB[buf]+f*4,4)}, {vr(XB[xb]+(par*2+ks)*4,4)}, {vr(acc(mt),16)}")

    stamp(a, 1)
    a(f"s_waitcnt vmcnt({vm.need(('x',0),('wq',0))})")
    a("s_barrier")
    q_rd_x(0)
    for f in range(8):
        q_rd(0, f, 0)

    kvq = kv_pieces(0) + kv_pieces(1)
    kv_sched = {}
    nit = 29 - KV_START
    for idx, p in enumerate(kvq):
        it = KV_START + (idx * nit) // len(kvq)
        kv_sched.setdefault(it, []).append(p)
    kv_sched.setdefault(29, []).extend(kv_pieces(2))
    kv_sched.setdefault(31, []).extend(kv_pieces(3))

    def q_iter(cn):
        buf = cn & 1
        m = cn >> 1
        xb = m & 1
        has_next = cn < 31
        needs = []
        if has_next: needs.append(("wq", cn + 1))
        if cn % 2 == 1 and m + 1 <= 15: needs.append(("x", m + 1))
        w = vm.need(*needs) if needs else None
        if w is not None:
            a(f"s_waitcnt vmcnt({w}) lgkmcnt(0)")
        else:
            a("s_waitcnt lgkmcnt(0)")
        a("s_barrier")
        pieces = []
        if cn % 2 == 0 and m + 2 <= 15: pieces += x_pieces(m + 2)
        if cn + 4 <= 31: pieces += wq_pieces(cn + 4)
        pieces += kv_sched.get(cn, [])
        slots = {}
        for i, p in enumerate(pieces):
            slots.setdefault((i * 8) // max(len(pieces), 1), []).append(p)
        rds = []
        if has_next:
            rds += [(lambda f=f: q_rd(buf ^ 1, f, (cn + 1) & 3)) for f in range(8)]
        if cn % 2 == 1 and m + 1 <= 15:
            rds.append(lambda: q_rd_x(m + 1))
        RPM = int(os.environ.get("RPM", "2"))
        for f in range(8):
            q_mm(buf, f, xb, cn & 1)
            for r_ in rds[f*RPM:(f+1)*RPM]:
                r_()
            for p in slots.get(f, []):
                p()
        return w

    ngrp = KV_START // 4
    a(f"s_mov_b32 s{sCnt}, 0")
    a.lab("L_qp_loop")
    ws0 = [q_iter(cn) for cn in range(4)]
    a(f"s_add_u32 s{sCnt}, s{sCnt}, 1")
    a(f"s_cmp_lt_u32 s{sCnt}, {ngrp}")
    a("s_cbranch_scc1 L_qp_loop")
    save = a.l
    for gI in range(1, ngrp):
        a.l = []
        wsg = [q_iter(gI * 4 + k) for k in range(4)]
        assert wsg == ws0, (wsg, ws0)
    a.l = save
    for cn in range(KV_START, 32):
        q_iter(cn)

    stamp(a, 2)
    a("s_nop 7")
    a("s_nop 3")
    for mt in range(4):
        for s_ in range(2):
            q = QF + (mt * 2 + s_) * 4
            x = acc(mt) + s_ * 8
            for j in range(4):
                a(f"v_cvt_pk_bf16_f32 v{q+j}, v{x+2*j}, v{x+2*j+1}")
    for i in range(64):
        a(f"v_mov_b32 v{ACC+i}, 0")
    a(f"v_mov_b32 v{vM}, 0xff800000")
    a(f"v_mov_b32 v{vLp}, 0")
    a(f"v_mov_b32 v{vLp+1}, 0")
    assert vm.need(("kv", 0)) >= 12 and vm.need(("kv", 1)) >= 8

    def adv_slot(s):
        a(f"s_add_u32 s{s}, s{s}, 32768")
        a(f"s_cmp_ge_u32 s{s}, 163840")
        a(f"s_cselect_b32 s{s}, 0, s{s}")
    def dma_kv_pieces(isK):
        srd = sK if isK else sV
        out = []
        for i in range(4):
            def p(i=i):
                a(f"s_add_u32 m0, s{sSlotW}, s{sM0kv}")
                a("s_nop 0")
                if not os.environ.get("X_NODMA"): a(f"buffer_load_dwordx4 v{kv_voff(isK,i)}, {sr(srd,4)}, s{sKVoff} offen offset:{i*1024} {KVF} lds")
                if i == 3:
                    if not isK and not os.environ.get("NOADVKV"):
                        a(f"s_add_u32 s{sKVoff}, s{sKVoff}, 16384")
                    adv_slot(sSlotW)
            out.append(p)
        return out
    def k_addr():
        a(f"v_add_u32 v{vAd}, s{sSlotR}, v{vA0k}")
        for ks in range(1, 8):
            a(f"v_xor_b32 v{vAd+ks}, {ks<<5}, v{vAd}")
        adv_slot(sSlotR)
    def v_addr():
        a(f"v_add_u32 v{vAv}, s{sSlotR}, v{vA0v}")
        for T in range(1, 4):
            a(f"v_xor_b32 v{vAv+T}, {T<<6}, v{vAv}")
        adv_slot(sSlotR)
    def rdk(f):
        t, ks = f >> 3, f & 7
        if not os.environ.get("X_NOLDS"): a(f"ds_read_b128 {vr(FR+f*4,4)}, v{vAd+ks} offset:{t*8192}")
    def rdv(f):
        t, s_, T = f >> 3, (f >> 2) & 1, f & 3
        for hh in range(2):
            if not os.environ.get("X_NOLDS"): a(f"ds_read_b64_tr_b16 {vr(FR+f*4+hh*2,2)}, v{vAv+T} offset:{(t*32+s_*16+hh*8)*256}")
    def mmk(f):
        t, ks = f >> 3, f & 7
        cin = "0" if ks == 0 else vr(ss(t),16)
        a(f"{MF} {vr(ss(t),16)}, {vr(FR+f*4,4)}, {vr(QF+ks*4,4)}, {cin}")
    def mmv(f):
        t, s_, T = f >> 3, (f >> 2) & 1, f & 3
        a(f"{MF} {vr(acc(T),16)}, {vr(FR+f*4,4)}, {vr(pf(t,s_),4)}, {vr(acc(T),16)}")

    rare = []
    def cvt_ops(t):
        ops = []
        for s_ in range(2):
            p = pf(t, s_)
            x = ss(t) + s_ * 8
            for j in range(4):
                ops.append(f"v_cvt_pk_bf16_f32 v{p+j}, v{x+2*j}, v{x+2*j+1}")
        return ops
    def sm_max_ops(t):
        ops = []
        o = ops.append
        vals = [ss(t) + r for r in range(16)]
        mx, t1_ = vT, vT + 1
        o(f"v_max3_f32 v{mx}, v{vals[0]}, v{vals[1]}, v{vals[2]}")
        o(f"v_max3_f32 v{t1_}, v{vals[3]}, v{vals[4]}, v{vals[5]}")
        o(f"v_max3_f32 v{mx}, v{mx}, v{vals[6]}, v{vals[7]}")
        o(f"v_max3_f32 v{t1_}, v{t1_}, v{vals[8]}, v{vals[9]}")
        o(f"v_max3_f32 v{mx}, v{mx}, v{vals[10]}, v{vals[11]}")
        o(f"v_max3_f32 v{t1_}, v{t1_}, v{vals[12]}, v{vals[13]}")
        o(f"v_max3_f32 v{mx}, v{mx}, v{vals[14]}, v{vals[15]}")
        o(f"v_max_f32 v{mx}, v{mx}, v{t1_}")
        o(f"v_mov_b32 v{t1_}, v{mx}\n    s_nop 1\n    v_permlane32_swap_b32 v{mx}, v{t1_}")
        o(f"v_max_f32 v{mx}, v{mx}, v{t1_}")
        o(f"v_mul_f32 v{mx}, s{sC}, v{mx}")
        o(f"v_add_f32 v{t1_}, 0x41000000, v{vM}")
        o(f"v_cmp_gt_f32 vcc, v{mx}, v{t1_}\n    s_cbranch_vccnz L_rare{t}\nL_back{t}:")
        r = [f"L_rare{t}:"]
        r.append(f"    v_max_f32 v{mx}, v{mx}, v{vM}")
        r.append(f"    v_sub_f32 v{t1_}, v{vM}, v{mx}")
        r.append(f"    v_exp_f32 v{t1_}, v{t1_}")
        r.append(f"    v_mov_b32 v{vM}, v{mx}")
        r.append(f"    v_mul_f32 v{vLp}, v{vLp}, v{t1_}")
        r.append(f"    v_mul_f32 v{vLp+1}, v{vLp+1}, v{t1_}")
        for i in range(64):
            r.append(f"    v_mul_f32 v{ACC+i}, v{ACC+i}, v{t1_}")
        if t == 1:
            for i in range(16):
                r.append(f"    v_mul_f32 v{ss(0)+i}, v{ss(0)+i}, v{t1_}")
            for x in cvt_ops(0):
                r.append("    " + x)
            r.append("    s_nop 1")
        r.append(f"    s_branch L_back{t}")
        rare.append("\n".join(r))
        return ops
    def sm_exp_ops(t):
        ops = []
        o = ops.append
        vals = [ss(t) + r for r in range(16)]
        if PK:
            for i in range(0, 16, 2):
                x = vals[i]
                o(f"v_pk_fma_f32 {vr(x,2)}, {vr(x,2)}, s[100:101], {vr(vM,2)} op_sel_hi:[1,1,0] neg_lo:[0,0,1] neg_hi:[0,0,1]")
        else:
            for x in vals:
                o(f"v_fma_f32 v{x}, v{x}, s{sC}, -v{vM}")
        for x in vals:
            o(f"v_exp_f32 v{x}, v{x}")
        ops += cvt_ops(t)
        if PK:
            for i in range(0, 16, 2):
                o(f"v_pk_add_f32 {vr(vLp,2)}, {vr(vLp,2)}, {vr(vals[i],2)}")
        else:
            for i in range(0, 16, 2):
                o(f"v_add_f32 v{vLp}, v{vLp}, v{vals[i]}")
                o(f"v_add_f32 v{vLp+1}, v{vLp+1}, v{vals[i+1]}")
        return ops
    NOSM = os.environ.get("X_NOSM")

    def interleave(mf, ops, extra):
        n = len(mf)
        k = 0
        for i in range(n):
            mf[i]()
            tgt = ((i + 1) * len(ops)) // n
            while k < tgt:
                a(ops[k]); k += 1
            if i in extra:
                extra[i]()

    if STAG:
        a(f"s_cmp_eq_u32 s{sE}, 0")
        a("s_cbranch_scc1 L_nostag")
        a("s_barrier")
        a.lab("L_nostag")
    a("s_waitcnt vmcnt(12)")
    a("s_barrier")
    k_addr()
    for f in range(16):
        rdk(f)
    for p in dma_kv_pieces(True):
        p()
    a(f"s_mov_b32 s{sCnt}, 0")
    a.lab("L_at_loop")
    for f in range(8):
        if f % 2 == 0:
            a(f"s_waitcnt lgkmcnt({14-f})")
        mmk(f)
    a("s_waitcnt vmcnt(12) lgkmcnt(0)")
    a("s_barrier")
    v_addr()
    pv = dma_kv_pieces(False)
    def mB(f):
        def g_():
            mmk(8 + f)
            rdv(f)
        return g_
    opsB = [] if NOSM else ["s_nop 3"] + sm_max_ops(0) + sm_exp_ops(0)
    interleave([mB(f) for f in range(8)], opsB, {0: pv[0], 2: pv[1], 4: pv[2], 6: pv[3]})
    a("s_nop 7")
    a("s_nop 3")
    if not NOSM:
        for o in sm_max_ops(1):
            a(o)
    def mC(f):
        def g_():
            a(f"s_waitcnt lgkmcnt({14 - 2*f + 2*f})") if False else None
            a(f"s_waitcnt lgkmcnt({min(14, 14)})") if False else None
            a(f"s_waitcnt lgkmcnt({14 - 2*f + 2*f - 0})") if False else None
            a(f"s_waitcnt lgkmcnt({(7 - f) * 2 + 2 * f})") if False else None
            a("s_waitcnt lgkmcnt(14)")
            mmv(f)
            rdv(8 + f)
        return g_
    interleave([mC(f) for f in range(8)], [] if NOSM else sm_exp_ops(1), {})
    a("s_waitcnt vmcnt(12) lgkmcnt(0)")
    a("s_barrier")
    k_addr()
    pk = dma_kv_pieces(True)
    for f in range(8):
        rdk(f)
    for f in range(8):
        mmv(8 + f)
        rdk(8 + f)
        if f % 2 == 0:
            pk[f // 2]()
    a(f"s_add_u32 s{sCnt}, s{sCnt}, 1")
    a(f"s_cmp_lt_u32 s{sCnt}, 8")
    a("s_cbranch_scc1 L_at_loop")
    a("s_branch L_at_done")
    for r in rare:
        a.l.append(r)
    a.lab("L_at_done")
    if STAG:
        a(f"s_cmp_eq_u32 s{sE}, 1")
        a("s_cbranch_scc1 L_nostag2")
        a("s_barrier")
        a.lab("L_nostag2")
    a("s_waitcnt lgkmcnt(0)")
    stamp(a, 3)
    if PF_WO:
        a(f"s_lshl_b32 s{sT0}, s{sWq}, 13")
        for i in range(8):
            a(f"buffer_load_dwordx3 {vr(vPFd,3)}, v{vPFd+3}, {sr(sWO,4)}, s{sT0} offen")
            a(f"s_add_u32 s{sT0}, s{sT0}, 1024")
    a("s_nop 7")
    a("s_nop 3")
    l = vLp
    a(f"v_add_f32 v{l}, v{l}, v{l+1}")
    a(f"v_mov_b32 v{vT+1}, v{l}")
    a("s_nop 1")
    a(f"v_permlane32_swap_b32 v{l}, v{vT+1}")
    a("s_nop 1")
    a(f"v_add_f32 v{l}, v{l}, v{vT+1}")
    a(f"v_rcp_f32 v{l}, v{l}")
    a("s_nop 0")
    a(f"s_mov_b32 s{sT1}, 7168")
    a(f"s_mov_b32 s{sT2}, 14336")
    a(f"s_mov_b32 s{sT3}, 21504")
    for T in range(4):
        for s_ in range(2):
            o = FR + (T * 2 + s_) * 4
            x = acc(T) + s_ * 8
            for r in range(8):
                a(f"v_mul_f32 v{x+r}, v{x+r}, v{l}")
            for j in range(4):
                a(f"v_cvt_pk_bf16_f32 v{o+j}, v{x+2*j}, v{x+2*j+1}")
            so = "0" if T == 0 else f"s{sT0+T}"
            a(f"buffer_store_dwordx4 {vr(o,4)}, v{vOst}, {sr(sO,4)}, {so} offen offset:{s_*512}")
    a.lab("L_attn_fin")
    if DIAG:
        a("s_waitcnt vmcnt(0)")
        stamp(a, 4)
        diag_dump(a, 52, sW, 128 << 20, 3)
    a.lab("L_attn_end")
    a("s_endpgm")

def gen_oproj(a):
    NST = OP_DEPTH
    assert 32 % NST == 0
    sW = 3
    sOo, sWO, sOUT = 20, 24, 28
    sKo, sKw = 32, 33
    sPo, sPw = 34, 35
    sCnt = 36
    sBig = 39
    sRing = 40
    vLane = 1
    vO0, vO1 = 2, 3
    vWd = 4
    vRd = 8
    g, c = 12, 13
    vT = 14
    ST = 32
    AF = ST + NST * 28
    def of(st, nt): return ST + st * 28 + nt * 4
    def acc(i, nt): return (nt * 4 + i) * 4
    RING = NST * 4096

    a.lab("oproj_kernel")
    a("s_cmp_ge_u32 s2, 256")
    a("s_cbranch_scc1 L_op_end")
    stamp(a, 0)
    if DIAG: a("s_memrealtime s[78:79]")
    a("s_and_b32 s4, s2, 7")
    a("s_lshr_b32 s5, s2, 3")
    a("s_lshr_b32 s6, s4, 2")
    a("s_bfe_u32 s7, s4, 0x10001")
    a("s_lshl_b32 s7, s7, 2")
    a("s_and_b32 s8, s5, 3")
    a("s_add_u32 s7, s7, s8")
    a("s_and_b32 s8, s4, 1")
    a("s_lshl_b32 s8, s8, 3")
    a("s_lshr_b32 s9, s5, 2")
    a("s_add_u32 s8, s8, s9")
    a("s_mul_i32 s9, s6, 40")
    a("s_add_u32 s10, s0, s9")
    a("s_addc_u32 s11, s1, 0")
    a("s_load_dwordx2 s[12:13], s[10:11], 32")
    a("s_load_dwordx2 s[14:15], s[0:1], 80")
    a("s_load_dwordx2 s[16:17], s[0:1], 96")
    a(f"v_and_b32 v{vLane}, 63, v0")
    a("v_lshrrev_b32 v8, 6, v0")
    a("s_nop 0")
    a(f"v_readfirstlane_b32 s{sW}, v8")
    a(f"s_mov_b32 s{sBig}, 0x7f000000")
    a(f"v_lshrrev_b32 v{g}, 4, v{vLane}")
    a(f"v_and_b32 v{c}, 15, v{vLane}")
    a(f"v_lshlrev_b32 v{vO0}, 4, v{vLane}")
    a(f"v_add_u32 v{vO1}, 4096, v{vO0}")
    a(f"s_mul_i32 s{sRing}, s{sW}, {RING}")
    t0, t1, t2 = 20, 21, 22
    a(f"v_lshrrev_b32 v{t0}, 3, v{vLane}")
    a(f"v_bfe_u32 v{t1}, v{vLane}, 4, 2")
    a(f"v_lshlrev_b32 v{t1}, 1, v{t1}")
    a(f"v_and_b32 v{t2}, 7, v{vLane}")
    a(f"v_xor_b32 v{t1}, v{t1}, v{t2}")
    a(f"v_lshlrev_b32 v{t1}, 4, v{t1}")
    a(f"v_lshl_add_u32 v{vWd}, v{t0}, 11, v{t1}")
    for i in range(1, 4):
        a(f"v_add_u32 v{vWd+i}, {i*(8*2048-1024)}, v{vWd}")
    rp, cp = 23, 24
    a(f"v_bfe_u32 v{rp}, v{vLane}, 2, 2")
    a(f"v_and_b32 v{cp}, 3, v{vLane}")
    a(f"v_and_b32 v{t0}, 1, v{g}")
    a(f"v_lshlrev_b32 v{t0}, 1, v{t0}")
    a(f"v_lshrrev_b32 v{t1}, 1, v{rp}")
    a(f"v_add_u32 v{t0}, v{t0}, v{t1}")
    a(f"v_lshlrev_b32 v{t0}, 1, v{t0}")
    a(f"v_lshrrev_b32 v{t1}, 1, v{cp}")
    a(f"v_xor_b32 v{t0}, v{t0}, v{t1}")
    a(f"v_lshlrev_b32 v{t0}, 4, v{t0}")
    a(f"v_and_b32 v{t1}, 1, v{cp}")
    a(f"v_lshl_or_b32 v{t0}, v{t1}, 3, v{t0}")
    a(f"v_and_b32 v{t1}, 1, v{g}")
    a(f"v_lshl_add_u32 v{t1}, v{t1}, 2, v{rp}")
    a(f"v_lshrrev_b32 v{t2}, 1, v{g}")
    a(f"v_lshl_add_u32 v{t1}, v{t2}, 4, v{t1}")
    a(f"v_lshl_add_u32 v{t0}, v{t1}, 7, v{t0}")
    a(f"v_add_u32 v{vRd}, s{sRing}, v{t0}")
    for i in range(1, 4):
        a(f"v_xor_b32 v{vRd+i}, {i<<5}, v{vRd}")
    for i in range(112):
        a(f"v_accvgpr_write_b32 a{i}, 0")
    a("s_waitcnt lgkmcnt(0)")
    a("s_lshl_b32 s9, s6, 3")
    a("s_add_u32 s9, s9, s7")
    a("s_mul_i32 s9, s9, 917504")
    a(f"s_add_u32 s{sOo}, s16, s9")
    a(f"s_addc_u32 s{sOo+1}, s17, 0")
    a(f"s_mov_b32 s{sOo+2}, 917504")
    a(f"s_mov_b32 s{sOo+3}, 0x00020000")
    a("s_lshl_b32 s9, s8, 7")
    a(f"s_add_u32 s{sWO}, s12, s9")
    a(f"s_addc_u32 s{sWO+1}, s13, 0")
    a(f"s_sub_u32 s{sWO+2}, 8388608, s9")
    a(f"s_mov_b32 s{sWO+3}, 0x00020000")
    a("s_mul_i32 s10, s7, 458752")
    a("s_lshl_b32 s11, s6, 11")
    a("s_add_u32 s10, s10, s11")
    a("s_add_u32 s10, s10, s9")
    a(f"s_add_u32 s{sOUT}, s14, s10")
    a(f"s_addc_u32 s{sOUT+1}, s15, 0")
    a(f"s_mov_b32 s{sOUT+2}, {111*4096+128}")
    a(f"s_mov_b32 s{sOUT+3}, 0x00020000")
    a(f"s_mul_i32 s{sKo}, s{sW}, {32*7168}")
    a(f"s_lshl_b32 s{sKw}, s{sW}, 21")

    def ld_wo(st, so):
        a(f"s_add_u32 m0, s{sRing}, {st*4096}")
        a("s_nop 0")
        for i in range(4):
            a(f"buffer_load_dwordx4 v{vWd+i}, {sr(sWO,4)}, s{so} offen offset:{i*1024} {os.environ.get('OPF','')} lds")
    def ld_o(st, so):
        for nt in range(7):
            v = vO0 if nt < 4 else vO1
            a(f"buffer_load_dwordx4 {vr(of(st,nt),4)}, v{v}, {sr(sOo,4)}, s{so} offen offset:{(nt&3)*1024}")
    def rd_af(st, buf):
        for i in range(4):
            for hh in range(2):
                a(f"ds_read_b64_tr_b16 {vr(AF+buf*16+i*4+hh*2,2)}, v{vRd+i} offset:{st*4096+hh*1024}")
    for st in range(NST):
        ld_wo(st, sKw)
        ld_o(st, sKo)
        a(f"s_add_u32 s{sKw}, s{sKw}, 65536")
        a(f"s_add_u32 s{sKo}, s{sKo}, 7168")
    stamp(a, 1)
    a(f"s_waitcnt vmcnt({(NST-1)*11+7})")
    rd_af(0, 0)
    a(f"s_mov_b32 s{sCnt}, 0")
    a.lab("L_op_loop")
    for st in range(NST):
        buf = st & 1
        nst = (st + 1) % NST
        a(f"s_cmp_lt_u32 s{sCnt}, {32//NST - 1}")
        a(f"s_cselect_b32 s{sPw}, s{sKw}, s{sBig}")
        a(f"s_cselect_b32 s{sPo}, s{sKo}, s{sBig}")
        a(f"s_waitcnt vmcnt({7+(NST-2)*11}) lgkmcnt(0)")
        ld_wo(st, sPw)
        rd_af(nst, buf ^ 1)
        for nt in range(7):
            for i in range(4):
                a(f"v_mfma_f32_16x16x32_bf16 {ar(acc(i,nt),4)}, {vr(AF+buf*16+i*4,4)}, {vr(of(st,nt),4)}, {ar(acc(i,nt),4)}")
        ld_o(st, sPo)
        a(f"s_add_u32 s{sKw}, s{sKw}, 65536")
        a(f"s_add_u32 s{sKo}, s{sKo}, 7168")
    a(f"s_add_u32 s{sCnt}, s{sCnt}, 1")
    a(f"s_cmp_lt_u32 s{sCnt}, {32//NST}")
    a("s_cbranch_scc1 L_op_loop")
    stamp(a, 2)
    a("s_waitcnt vmcnt(0) lgkmcnt(0)")
    a("s_barrier")
    a(f"s_mul_i32 s4, s{sW}, 28672")
    a(f"v_add_u32 v{vT}, s4, v{vO0}")
    for nt in range(7):
        for i in range(4):
            a(f"ds_write_b128 v{vT}, {ar(acc(i,nt),4)} offset:{(nt*4+i)*1024}")
    a("s_waitcnt lgkmcnt(0)")
    a("s_barrier")
    a(f"s_lshl_b32 s4, s{sW}, 13")
    a(f"v_add_u32 v{vT}, s4, v{vO0}")
    a(f"v_add_u32 v{vT+1}, 57344, v{vT}")
    a(f"v_lshlrev_b32 v{vT+2}, 12, v{c}")
    a(f"v_lshl_add_u32 v{vT+2}, v{g}, 3, v{vT+2}")
    a(f"s_lshl_b32 s4, s{sW}, 17")
    a(f"v_add_u32 v{vT+2}, s4, v{vT+2}")
    a(f"s_mov_b32 s5, 65536")
    for n2 in range(2):
        if n2 == 1:
            a(f"s_cmp_eq_u32 s{sW}, 3")
            a("s_cbranch_scc1 L_op_fin")
        R = 32
        for i in range(4):
            for pw in range(4):
                vb = vT if pw < 2 else vT + 1
                a(f"ds_read_b128 {vr(R+(i*4+pw)*4,4)}, v{vb} offset:{(pw&1)*28672+n2*4096+i*1024}")
        a("s_waitcnt lgkmcnt(0)")
        O = 100 + n2 * 8
        for i in range(4):
            for r in range(4):
                b0 = R + (i*4)*4 + r
                a(f"v_add_f32 v{b0}, v{b0}, v{b0+4}")
                a(f"v_add_f32 v{b0+8}, v{b0+8}, v{b0+12}")
                a(f"v_add_f32 v{b0}, v{b0}, v{b0+8}")
            b0 = R + i * 16
            a(f"v_cvt_pk_bf16_f32 v{O+i*2}, v{b0}, v{b0+1}")
            a(f"v_cvt_pk_bf16_f32 v{O+i*2+1}, v{b0+2}, v{b0+3}")
        so = "0" if n2 == 0 else "s5"
        for i in range(4):
            a(f"buffer_store_dwordx2 {vr(O+i*2,2)}, v{vT+2}, {sr(sOUT,4)}, {so} offen offset:{i*32}")
    a.lab("L_op_fin")
    if DIAG:
        a("s_waitcnt vmcnt(0)")
        stamp(a, 3)
        diag_dump(a, 16, sW, 129 << 20)
    a.lab("L_op_end")
    a("s_endpgm")
    return AF + 32


HEADER = open("cdna_kernels/" + NAME + ".s.ref").read().split("; Override launch")[0]

def kd(name, vgpr, accum, sgpr=102):
    return f""".amdhsa_kernel {name}
  .amdhsa_next_free_vgpr {vgpr}
  .amdhsa_next_free_sgpr {sgpr}
  .amdhsa_accum_offset {accum}
  .amdhsa_group_segment_fixed_size 0
  .amdhsa_kernarg_size 104
  .amdhsa_user_sgpr_count 2
  .amdhsa_user_sgpr_kernarg_segment_ptr 1
  .amdhsa_system_sgpr_workgroup_id_x 1
.end_amdhsa_kernel
"""

def main():
    out = HEADER
    out += "; @launch kernel=attn_kernel grid=(256,1,1) block=(512,1,1) lds=163840\n"
    out += "; @launch kernel=oproj_kernel grid=(256,1,1) block=(256,1,1) lds=114688\n"
    out += '.amdgcn_target "amdgcn-amd-amdhsa--gfx950"\n.text\n'
    for name, fn in (("attn_kernel", gen_attn), ("oproj_kernel", gen_oproj)):
        a = A()
        fn(a)
        out += f".globl {name}\n.p2align 8\n.type {name},@function\n" + a.text()
    out += '.section .rodata,"a"\n.p2align 6\n'
    out += kd("attn_kernel", 256, 256)
    out += ".p2align 6\n"
    out += kd("oproj_kernel", 368, 256)
    path = sys.argv[1] if len(sys.argv) > 1 else "cdna_kernels/" + NAME + ".s"
    open(path, "w").write(out)

if __name__ == "__main__":
    main()
```

```python
import sys, os, struct
DIAG = int(os.environ.get("DIAG", "0"))
NAME = "concat_heads__mha_block_cached__mha_block_cached__near_ridge"
PF_WQ = int(os.environ.get("PF_WQ", "1"))
PF_WO = int(os.environ.get("PF_WO", "1"))
OP_DEPTH = int(os.environ.get("OP_DEPTH", "4"))
PRIO = int(os.environ.get("PRIO", "1"))

class A:
    def __init__(self):
        self.l = []
    def __call__(self, s):
        self.l.append("    " + s)
    def lab(self, s):
        self.l.append(s + ":")
    def text(self):
        return "\n".join(self.l) + "\n"

def vr(a, n):
    return f"v[{a}:{a+n-1}]" if n > 1 else f"v{a}"
def ar(a, n):
    return f"a[{a}:{a+n-1}]" if n > 1 else f"a{a}"
def sr(a, n):
    return f"s[{a}:{a+n-1}]" if n > 1 else f"s{a}"

SCALE_C = 0.08838834764831845 * 1.4426950408889634
def f32bits(x):
    return struct.unpack("<I", struct.pack("<f", x))[0]

def stamp(a, i):
    if DIAG:
        a("s_waitcnt lgkmcnt(0)")
        a(f"s_memtime s[{60+2*i}:{61+2*i}]")
        a("s_waitcnt lgkmcnt(0)")
def diag_dump(a, wsreg, sW, region, lg=2):
    if not DIAG: return
    a("s_memrealtime s[80:81]")
    a("s_getreg_b32 s82, hwreg(HW_REG_HW_ID)")
    a("s_getreg_b32 s83, hwreg(HW_REG_XCC_ID)")
    a("s_waitcnt lgkmcnt(0)")
    a(f"s_lshl_b32 s84, s2, {lg}")
    a(f"s_add_u32 s84, s84, s{sW}")
    a(f"s_lshl_b32 s84, s84, 7")
    a(f"s_add_u32 s84, s84, {region}")
    a(f"s_add_u32 s88, s{wsreg}, s84")
    a(f"s_addc_u32 s89, s{wsreg+1}, 0")
    a("s_mov_b32 s90, 128")
    a("s_mov_b32 s91, 0x00020000")
    a("v_mov_b32 v1, 0")
    for i in range(24):
        a(f"v_mov_b32 v2, s{60+i}")
        a(f"buffer_store_dword v2, v1, s[88:91], 0 offen offset:{i*4}")
        a("s_waitcnt vmcnt(0)")

class VM:
    def __init__(self):
        self.ops = []
    def issue(self, tag, n):
        self.ops += [tag] * n
    def need(self, *tags):
        last = max(i for i, t in enumerate(self.ops) if t in tags)
        for t in tags:
            assert t in self.ops, t
        return len(self.ops) - 1 - last

KVF = os.environ.get("KVF", "")
WQF = os.environ.get("WQF", "")
KV_START = int(os.environ.get("KV_START", "20"))

def gen_attn(a):
    PK = int(os.environ.get("PK", "1"))
    STAG = int(os.environ.get("STAG", "0"))
    sW = 3
    sWq = 99
    sE = 96
    sX, sWQ, sK, sV, sO, sWO = 20, 24, 28, 32, 36, 56
    sSlotR, sSlotW = 40, 41
    sM0kv = 42
    sWQoff = 43
    sXoff = 44
    sKVoff = 45
    sCnt = 46
    sC = 47
    sT0, sT1, sT2, sT3 = 48, 49, 50, 51
    sM0q = 92
    sM0x = 93
    vLane = 1
    vWQd = 2
    vXd = 4
    vKd = 6
    vVd = 10
    vA0k, vA0v = 11, 12
    vOst = 13
    vAd = 14
    vAv = 22
    vM = 26
    vLp = 28
    vT = 30
    vPFd = 44
    vP = 48
    ACC = 64
    FR = 128
    QF = 192
    SS = 224
    QB = [128, 160]
    XB = [192, 208]
    WQ0, X0 = 65536, 131072
    MF = "v_mfma_f32_32x32x16_bf16"

    def acc(T): return ACC + T * 16
    def ss(t): return SS + t * 16
    def pf(t, s_): return vP + (t * 2 + s_) * 4

    a.lab("attn_kernel")
    a("s_cmp_ge_u32 s2, 256")
    a("s_cbranch_scc1 L_attn_end")
    stamp(a, 0)
    if DIAG: a("s_memrealtime s[78:79]")
    a("s_and_b32 s4, s2, 7")
    a("s_lshr_b32 s5, s2, 3")
    a("s_lshr_b32 s6, s4, 2")
    a("s_and_b32 s7, s4, 3")
    a("s_lshl_b32 s7, s7, 2")
    a("s_and_b32 s8, s5, 3")
    a("s_add_u32 s7, s7, s8")
    a("s_lshr_b32 s8, s5, 2")
    a("s_mul_i32 s9, s6, 40")
    a("s_add_u32 s10, s0, s9")
    a("s_addc_u32 s11, s1, 0")
    a("s_load_dwordx8 s[12:19], s[10:11], 0")
    a("s_load_dwordx2 s[94:95], s[10:11], 32")
    a("s_load_dwordx2 s[52:53], s[0:1], 96")
    a(f"v_and_b32 v{vLane}, 63, v0")
    a("v_lshrrev_b32 v2, 6, v0")
    a("s_nop 0")
    a(f"v_readfirstlane_b32 s{sW}, v2")
    a(f"s_mov_b32 s{sC}, 0x{f32bits(SCALE_C):08x}")
    a(f"s_mov_b32 s100, 0x{f32bits(SCALE_C):08x}")
    a(f"s_mov_b32 s101, 0x{f32bits(SCALE_C):08x}")
    g, c, rp, cp, hh_, m_ = 36, 37, 38, 39, 42, 43
    t0, t1 = 40, 41
    a(f"v_lshrrev_b32 v{g}, 4, v{vLane}")
    a(f"v_and_b32 v{c}, 15, v{vLane}")
    a(f"v_bfe_u32 v{rp}, v{vLane}, 2, 2")
    a(f"v_and_b32 v{cp}, 3, v{vLane}")
    a(f"v_lshrrev_b32 v{hh_}, 5, v{vLane}")
    a(f"v_and_b32 v{m_}, 31, v{vLane}")
    a(f"s_and_b32 s{sWq}, s{sW}, 3")
    a(f"s_lshr_b32 s{sE}, s{sW}, 2")
    a(f"s_lshl_b32 s{sM0kv}, s{sW}, 12")
    a(f"s_lshl_b32 s{sM0q}, s{sW}, 11")
    a(f"s_add_u32 s{sM0x}, s{sM0q}, {X0}")
    a(f"s_add_u32 s{sM0q}, s{sM0q}, {WQ0}")
    a(f"v_lshlrev_b32 v{t1}, 2, v{hh_}")
    a(f"v_xor_b32 v{t1}, v{t1}, v{c}")
    a(f"v_lshlrev_b32 v{t1}, 4, v{t1}")
    a(f"v_lshl_add_u32 v{t1}, v{hh_}, 13, v{t1}")
    a(f"v_and_b32 v{t0}, 1, v{g}")
    a(f"v_lshl_add_u32 v{t1}, v{t0}, 8, v{t1}")
    a(f"s_lshl_b32 s{sT0}, s{sW}, 15")
    a(f"v_add_u32 v{vWQd}, s{sT0}, v{t1}")
    a(f"v_xor_b32 v{t1}, 128, v{vWQd}")
    a(f"v_add_u32 v{vWQd+1}, {2*8192-1024}, v{t1}")
    a(f"v_and_b32 v{t1}, 7, v{vLane}")
    a(f"v_xor_b32 v{t0}, v{g}, v{t1}")
    a(f"v_lshlrev_b32 v{t0}, 4, v{t0}")
    a(f"v_lshrrev_b32 v{t1}, 3, v{vLane}")
    a(f"v_lshl_add_u32 v{t0}, v{t1}, 11, v{t0}")
    a(f"v_add_u32 v{vXd}, s{sT0}, v{t0}")
    a(f"v_xor_b32 v{t0}, 64, v{vXd}")
    a(f"v_add_u32 v{vXd+1}, {8*2048-1024}, v{t0}")
    a("s_waitcnt lgkmcnt(0)")
    a("s_mul_i32 s9, s8, 229376")
    a(f"s_add_u32 s{sX}, s12, s9")
    a(f"s_addc_u32 s{sX+1}, s13, 0")
    a(f"s_mov_b32 s{sX+2}, 229376")
    a(f"s_mov_b32 s{sX+3}, 0x00020000")
    a("s_lshl_b32 s9, s7, 9")
    a(f"s_add_u32 s{sWQ}, s18, s9")
    a(f"s_addc_u32 s{sWQ+1}, s19, 0")
    a(f"s_sub_u32 s{sWQ+2}, 8388608, s9")
    a(f"s_mov_b32 s{sWQ+3}, 0x00020000")
    a(f"s_mov_b32 s{sWQoff}, 0")
    a(f"s_mov_b32 s{sXoff}, 0")

    vm = VM()
    XF = os.environ.get("XF", "")
    def wq_pieces(cn):
        q = cn & 3
        def p0():
            a(f"s_add_u32 m0, s{sM0q}, {q*16384}")
            a("s_nop 0")
            a(f"buffer_load_dwordx4 v{vWQd}, {sr(sWQ,4)}, s{sWQoff} offen {WQF} lds")
            vm.issue(("wq", cn), 1)
        def p1():
            a(f"s_add_u32 m0, s{sM0q}, {q*16384}")
            a("s_nop 0")
            a(f"buffer_load_dwordx4 v{vWQd+1}, {sr(sWQ,4)}, s{sWQoff} offen offset:1024 {WQF} lds")
            if not os.environ.get("NOADV"): a(f"s_add_u32 s{sWQoff}, s{sWQoff}, {32*8192}")
            vm.issue(("wq", cn), 1)
        return [p0, p1]
    def x_pieces(m):
        q = m & 1
        def p0():
            a(f"s_add_u32 m0, s{sM0x}, {q*16384}")
            a("s_nop 0")
            a(f"buffer_load_dwordx4 v{vXd}, {sr(sX,4)}, s{sXoff} offen {XF} lds")
            vm.issue(("x", m), 1)
        def p1():
            a(f"s_add_u32 m0, s{sM0x}, {q*16384}")
            a("s_nop 0")
            a(f"buffer_load_dwordx4 v{vXd+1}, {sr(sX,4)}, s{sXoff} offen offset:1024 {XF} lds")
            if not os.environ.get("NOADV"): a(f"s_add_u32 s{sXoff}, s{sXoff}, 128")
            vm.issue(("x", m), 1)
        return [p0, p1]
    def kv_voff(isK, i):
        return vKd + i if isK else vVd
    def kv_pieces(n):
        isK = n % 2 == 0
        srd = sK if isK else sV
        out = []
        for i in range(4):
            def p(i=i):
                a(f"s_add_u32 m0, s{sM0kv}, {n*32768}")
                a(f"s_mov_b32 s{sT0}, {(n>>1)*16384}")
                a(f"buffer_load_dwordx4 v{kv_voff(isK,i)}, {sr(srd,4)}, s{sT0} offen offset:{i*1024} {KVF} lds")
                vm.issue(("kv", n), 1)
            out.append(p)
        return out

    for p in x_pieces(0) + wq_pieces(0) + wq_pieces(1) + x_pieces(1) + wq_pieces(2) + wq_pieces(3):
        p()

    a(f"v_bfe_u32 v{t0}, v{m_}, 1, 3")
    a(f"v_xor_b32 v{t0}, v{t0}, v{hh_}")
    a(f"v_lshlrev_b32 v{t0}, 4, v{t0}")
    a(f"v_lshl_add_u32 v{t0}, v{m_}, 7, v{t0}")
    a(f"s_lshl_b32 s{sT0}, s{sWq}, 12")
    a(f"s_add_u32 s{sT0}, s{sT0}, {X0}")
    a(f"v_add_u32 v{vAd+4}, s{sT0}, v{t0}")
    for k in range(1, 4):
        a(f"v_xor_b32 v{vAd+4+k}, {k<<5}, v{vAd+4}")
    a(f"v_and_b32 v{t0}, 1, v{g}")
    a(f"v_and_b32 v{t1}, 1, v{cp}")
    a(f"v_lshl_or_b32 v{t0}, v{t0}, 1, v{t1}")
    a(f"v_lshl_or_b32 v{t0}, v{rp}, 2, v{t0}")
    a(f"v_lshlrev_b32 v{t0}, 4, v{t0}")
    a(f"v_lshrrev_b32 v{t1}, 1, v{cp}")
    a(f"v_lshl_or_b32 v{t0}, v{t1}, 3, v{t0}")
    a(f"v_lshl_add_u32 v{t1}, v{hh_}, 3, v{rp}")
    a(f"v_lshl_add_u32 v{t0}, v{t1}, 9, v{t0}")
    a(f"s_lshl_b32 s{sT0}, s{sE}, 8")
    a(f"s_add_u32 s{sT0}, s{sT0}, {WQ0}")
    a(f"v_add_u32 v{vAd}, s{sT0}, v{t0}")
    for k in range(1, 4):
        a(f"v_xor_b32 v{vAd+k}, {k<<6}, v{vAd}")
    a(f"s_lshl_b32 s{sT0}, s{sWq}, 12")
    a(f"v_xor_b32 v{t0}, v{g}, v{c}")
    a(f"v_lshlrev_b32 v{t0}, 4, v{t0}")
    a(f"v_lshl_add_u32 v{t0}, v{g}, 8, v{t0}")
    a(f"v_add_u32 v{vKd}, s{sT0}, v{t0}")
    for i in range(1, 4):
        a(f"v_xor_b32 v{vKd+i}, {i<<6}, v{vKd}")
    a(f"v_lshlrev_b32 v{t0}, 2, v{g}")
    a(f"v_xor_b32 v{t0}, v{t0}, v{c}")
    a(f"v_lshlrev_b32 v{t0}, 4, v{t0}")
    a(f"v_lshl_add_u32 v{t0}, v{g}, 8, v{t0}")
    a(f"v_add_u32 v{vVd}, s{sT0}, v{t0}")
    a(f"s_lshl_b32 s{sT1}, s{sE}, 14")
    a(f"v_xor_b32 v{t0}, v{hh_}, v{c}")
    a(f"v_lshlrev_b32 v{t0}, 4, v{t0}")
    a(f"v_lshl_add_u32 v{t0}, v{m_}, 8, v{t0}")
    a(f"v_add_u32 v{vA0k}, s{sT1}, v{t0}")
    a(f"v_and_b32 v{t0}, 1, v{g}")
    a(f"v_lshrrev_b32 v{t1}, 1, v{cp}")
    a(f"v_lshl_or_b32 v{t0}, v{t0}, 1, v{t1}")
    a(f"v_lshl_or_b32 v{t0}, v{rp}, 2, v{t0}")
    a(f"v_lshlrev_b32 v{t0}, 4, v{t0}")
    a(f"v_and_b32 v{t1}, 1, v{cp}")
    a(f"v_lshl_or_b32 v{t0}, v{t1}, 3, v{t0}")
    a(f"v_lshl_add_u32 v{t1}, v{hh_}, 2, v{rp}")
    a(f"v_lshl_add_u32 v{t0}, v{t1}, 8, v{t0}")
    a(f"v_add_u32 v{vA0v}, s{sT1}, v{t0}")
    a(f"v_and_b32 v{t0}, 1, v{g}")
    a(f"v_lshlrev_b32 v{t0}, 10, v{t0}")
    a(f"v_lshl_add_u32 v{t0}, v{hh_}, 8, v{t0}")
    a(f"v_lshl_add_u32 v{t0}, v{c}, 4, v{t0}")
    a(f"s_lshl_b32 s{sT0}, s{sWq}, 11")
    a(f"v_add_u32 v{t0}, s{sT0}, v{t0}")
    a(f"v_mov_b32 v{t1}, 0x40000000")
    a(f"v_cmp_gt_u32 vcc, 7168, v{t0}")
    a("s_nop 1")
    a(f"v_cndmask_b32 v{vOst}, v{t1}, v{t0}, vcc")
    a(f"v_lshlrev_b32 v27, 4, v{vLane}")
    a("s_lshl_b32 s7, s7, 1")
    a(f"s_add_u32 s7, s7, s{sE}")
    a("s_lshl_b32 s9, s8, 5")
    a("s_add_u32 s9, s9, s7")
    a("s_lshl_b32 s10, s9, 15")
    a("s_lshl_b32 s9, s9, 17")
    a(f"s_add_u32 s{sK}, s14, s9")
    a(f"s_addc_u32 s{sK+1}, s15, 0")
    a(f"s_mov_b32 s{sK+2}, 131072")
    a(f"s_mov_b32 s{sK+3}, 0x00020000")
    a(f"s_add_u32 s{sV}, s16, s9")
    a(f"s_addc_u32 s{sV+1}, s17, 0")
    a(f"s_mov_b32 s{sV+2}, 131072")
    a(f"s_mov_b32 s{sV+3}, 0x00020000")
    a(f"s_add_u32 s{sWO}, s94, s10")
    a(f"s_addc_u32 s{sWO+1}, s95, 0")
    a(f"s_mov_b32 s{sWO+2}, 32768")
    a(f"s_mov_b32 s{sWO+3}, 0x00020000")
    a("s_lshl_b32 s9, s6, 3")
    a("s_add_u32 s9, s9, s8")
    a("s_lshl_b32 s9, s9, 7")
    a("s_lshl_b32 s10, s7, 2")
    a("s_add_u32 s9, s9, s10")
    a("s_mul_i32 s9, s9, 7168")
    a(f"s_add_u32 s{sO}, s52, s9")
    a(f"s_addc_u32 s{sO+1}, s53, 0")
    a(f"s_mov_b32 s{sO+2}, 28672")
    a(f"s_mov_b32 s{sO+3}, 0x00020000")
    a(f"s_mov_b32 s{sSlotR}, 0")
    a(f"s_mov_b32 s{sSlotW}, 131072")
    a(f"s_mov_b32 s{sKVoff}, 32768")
    for i in range(64):
        a(f"v_mov_b32 v{ACC+i}, 0")

    def q_rd_x(m):
        xb = m & 1
        for k in range(4):
            a(f"ds_read_b128 {vr(XB[xb]+k*4,4)}, v{vAd+4+k} offset:{(m&1)*16384}")
    def q_rd(buf, f, q):
        ks, mt = f >> 2, f & 3
        for hh in range(2):
            a(f"ds_read_b64_tr_b16 {vr(QB[buf]+f*4+hh*2,2)}, v{vAd+mt} offset:{q*16384+ks*8192+hh*2048}")
    def q_mm(buf, f, xb, par):
        ks, mt = f >> 2, f & 3
        a(f"{MF} {vr(acc(mt),16)}, {vr(QB[buf]+f*4,4)}, {vr(XB[xb]+(par*2+ks)*4,4)}, {vr(acc(mt),16)}")

    stamp(a, 1)
    a(f"s_waitcnt vmcnt({vm.need(('x',0),('wq',0))})")
    a("s_barrier")
    q_rd_x(0)
    for f in range(8):
        q_rd(0, f, 0)

    kvq = kv_pieces(0) + kv_pieces(1)
    kv_sched = {}
    nit = 29 - KV_START
    for idx, p in enumerate(kvq):
        it = KV_START + (idx * nit) // len(kvq)
        kv_sched.setdefault(it, []).append(p)
    sPF = 98
    a(f"s_lshl_b32 s{sPF}, s{sWq}, 13")
    def pf_piece():
        a(f"buffer_load_dword v26, v27, {sr(sWO,4)}, s{sPF} offen")
        a(f"s_add_u32 s{sPF}, s{sPF}, 1024")
        vm.issue("pf", 1)
    PFD = 24 if False else 26
    EARLYR = int(os.environ.get("EARLYR", "0"))
    BURST = int(os.environ.get("BURST", "0"))
    if EARLYR:
        EREG = {2: SS, 3: SS + 16}
        def kvr_pieces(n):
            isK = n % 2 == 0
            srd = sK if isK else sV
            out = []
            for i in range(4):
                def p(i=i):
                    a(f"s_mov_b32 s{sT0}, {(n>>1)*16384}")
                    a(f"buffer_load_dwordx4 {vr(EREG[n]+i*4,4)}, v{kv_voff(isK,i)}, {sr(srd,4)}, s{sT0} offen offset:{i*1024} {KVF}")
                    vm.issue(("kvr", n), 1)
                out.append(p)
            return out
        def wr_pieces(n):
            def p():
                a(f"s_waitcnt vmcnt({vm.need(('kvr', n))})")
                a(f"s_add_u32 s{sT0}, s{sM0kv}, {n*32768}")
                a(f"v_add_u32 v{vT}, s{sT0}, v27")
                for i in range(4):
                    a(f"ds_write_b128 v{vT}, {vr(EREG[n]+i*4,4)} offset:{i*1024}")
            return [p]
        kv_sched = {}
        kvq = kv_pieces(0) + kv_pieces(1) + kvr_pieces(2) + kvr_pieces(3)
        nit = 28 - KV_START
        for idx, p in enumerate(kvq):
            it = KV_START + (idx * nit) // len(kvq)
            kv_sched.setdefault(it, []).append(p)
        kv_sched.setdefault(29, []).extend(wr_pieces(2))
        kv_sched.setdefault(31, []).extend(wr_pieces(3))
    elif BURST:
        kv_sched = {}
        if BURST == 1:
            for idx, p in enumerate(kvq):
                it = KV_START + (idx * nit) // len(kvq)
                kv_sched.setdefault(it, []).append(p)
        kv_sched.setdefault(29, []).extend(kv_pieces(2))
        kv_sched.setdefault(31, []).extend(kv_pieces(3))
    else:
        if PF_WO: kv_sched.setdefault(29, []).append(pf_piece)
        kv_sched.setdefault(29, []).extend(kv_pieces(2))
        kv_sched.setdefault(31, []).extend(kv_pieces(3))
    sPhase, sRelax = 90, 91
    NB = 8 if BURST == 1 else 16
    if BURST:
        a("s_lshr_b32 s9, s2, 3")
        a("s_mul_i32 s10, s9, 52")
        a("s_lshr_b32 s10, s10, 8")
        a("s_mul_i32 s10, s10, 5")
        a(f"s_sub_u32 s{sPhase}, s9, s10")
        a(f"s_mov_b32 s{sRelax}, 0")

    def q_iter(cn):
        buf = cn & 1
        m = cn >> 1
        xb = m & 1
        has_next = cn < 31
        needs = []
        if has_next: needs.append(("wq", cn + 1))
        if cn % 2 == 1 and m + 1 <= 15: needs.append(("x", m + 1))
        w = vm.need(*needs) if needs else None
        if BURST and cn < KV_START:
            lid = f"{cn&3}"
            a(f"s_cmp_lg_u32 s{sRelax}, 0")
            a(f"s_cbranch_scc1 L_rlx{lid}")
            a(f"s_waitcnt vmcnt({w}) lgkmcnt(0)")
            a(f"s_branch L_go{lid}")
            a.lab(f"L_rlx{lid}")
            a(f"s_waitcnt vmcnt({w+NB}) lgkmcnt(0)")
            a(f"s_sub_u32 s{sRelax}, s{sRelax}, 1")
            a.lab(f"L_go{lid}")
        elif w is not None:
            a(f"s_waitcnt vmcnt({w}) lgkmcnt(0)")
        else:
            a("s_waitcnt lgkmcnt(0)")
        a("s_barrier")
        if BURST and cn < KV_START and (cn & 3) == 0:
            a(f"s_cmp_lg_u32 s{sCnt}, s{sPhase}")
            a("s_cbranch_scc1 L_noburst")
            sv = list(vm.ops)
            if BURST == 2:
                for p in kv_pieces(0) + kv_pieces(1): p()
            for i in range(8): pf_piece()
            vm.ops = sv
            a(f"s_mov_b32 s{sRelax}, 2")
            a.lab("L_noburst")
        pieces = []
        if cn % 2 == 0 and m + 2 <= 15: pieces += x_pieces(m + 2)
        if cn + 4 <= 31: pieces += wq_pieces(cn + 4)
        pieces += kv_sched.get(cn, [])
        slots = {}
        for i, p in enumerate(pieces):
            slots.setdefault((i * 8) // max(len(pieces), 1), []).append(p)
        rds = []
        if has_next:
            rds += [(lambda f=f: q_rd(buf ^ 1, f, (cn + 1) & 3)) for f in range(8)]
        if cn % 2 == 1 and m + 1 <= 15:
            rds.append(lambda: q_rd_x(m + 1))
        RPM = int(os.environ.get("RPM", "2"))
        for f in range(8):
            q_mm(buf, f, xb, cn & 1)
            for r_ in rds[f*RPM:(f+1)*RPM]:
                r_()
            for p in slots.get(f, []):
                p()
        return w

    ngrp = KV_START // 4
    a(f"s_mov_b32 s{sCnt}, 0")
    a.lab("L_qp_loop")
    ws0 = [q_iter(cn) for cn in range(4)]
    a(f"s_add_u32 s{sCnt}, s{sCnt}, 1")
    a(f"s_cmp_lt_u32 s{sCnt}, {ngrp}")
    a("s_cbranch_scc1 L_qp_loop")
    save = a.l
    for gI in range(1, ngrp):
        a.l = []
        wsg = [q_iter(gI * 4 + k) for k in range(4)]
        assert wsg == ws0, (wsg, ws0)
    a.l = save
    for cn in range(KV_START, 32):
        q_iter(cn)

    stamp(a, 2)
    a("s_nop 7")
    a("s_nop 3")
    NEGM = 32
    for mt in range(4):
        for s_ in range(2):
            q = QF + (mt * 2 + s_) * 4
            x = acc(mt) + s_ * 8
            for j in range(8):
                a(f"v_mul_f32 v{x+j}, s{sC}, v{x+j}")
            for j in range(4):
                a(f"v_cvt_pk_bf16_f32 v{q+j}, v{x+2*j}, v{x+2*j+1}")
    for i in range(64):
        a(f"v_mov_b32 v{ACC+i}, 0")
    for i in range(16):
        a(f"v_mov_b32 v{NEGM+i}, 0")
    a(f"v_mov_b32 v{vLp}, 0")
    a(f"v_mov_b32 v{vLp+1}, 0")
    sFirst = 97
    a(f"s_mov_b32 s{sFirst}, 1")

    def adv_slot(s):
        a(f"s_add_u32 s{s}, s{s}, 32768")
        a(f"s_cmp_ge_u32 s{s}, 163840")
        a(f"s_cselect_b32 s{s}, 0, s{s}")
    def dma_kv_pieces(isK):
        srd = sK if isK else sV
        out = []
        for i in range(4):
            def p(i=i):
                a(f"s_add_u32 m0, s{sSlotW}, s{sM0kv}")
                a("s_nop 0")
                if not os.environ.get("X_NODMA"): a(f"buffer_load_dwordx4 v{kv_voff(isK,i)}, {sr(srd,4)}, s{sKVoff} offen offset:{i*1024} {KVF} lds")
                if i == 3:
                    if not isK and not os.environ.get("NOADVKV"):
                        a(f"s_add_u32 s{sKVoff}, s{sKVoff}, 16384")
                    adv_slot(sSlotW)
            out.append(p)
        return out
    def k_addr():
        a(f"v_add_u32 v{vAd}, s{sSlotR}, v{vA0k}")
        for ks in range(1, 8):
            a(f"v_xor_b32 v{vAd+ks}, {ks<<5}, v{vAd}")
        adv_slot(sSlotR)
    def v_addr():
        a(f"v_add_u32 v{vAv}, s{sSlotR}, v{vA0v}")
        for T in range(1, 4):
            a(f"v_xor_b32 v{vAv+T}, {T<<6}, v{vAv}")
        adv_slot(sSlotR)
    XR_, YR_ = FR, FR + 32
    def rdk(t, ks):
        if not os.environ.get("X_NOLDS"): a(f"ds_read_b128 {vr(XR_+ks*4,4)}, v{vAd+ks} offset:{t*8192}")
    def rdv(t, j):
        s_, T = j >> 2, j & 3
        for hh in range(2):
            if not os.environ.get("X_NOLDS"): a(f"ds_read_b64_tr_b16 {vr(YR_+j*4+hh*2,2)}, v{vAv+T} offset:{(t*32+s_*16+hh*8)*256}")
    def mmk(t, ks):
        cin = vr(NEGM,16) if ks == 0 else vr(ss(t),16)
        a(f"{MF} {vr(ss(t),16)}, {vr(XR_+ks*4,4)}, {vr(QF+ks*4,4)}, {cin}")
    def mmv(t, j):
        s_, T = j >> 2, j & 3
        a(f"{MF} {vr(acc(T),16)}, {vr(YR_+j*4,4)}, {vr(pf(t,s_),4)}, {vr(acc(T),16)}")
    def cvt_ops(t):
        ops = []
        for s_ in range(2):
            p = pf(t, s_)
            x = ss(t) + s_ * 8
            for j in range(4):
                ops.append(f"v_cvt_pk_bf16_f32 v{p+j}, v{x+2*j}, v{x+2*j+1}")
        return ops
    NOSM = os.environ.get("X_NOSM")
    uid = [0]
    rare = []
    def sm_a(t, first_chk):
        if NOSM: return []
        uid[0] += 1
        u = uid[0]
        ops = []
        o = ops.append
        vals = [ss(t) + r for r in range(16)]
        mx, t1_ = vT, vT + 1
        o(f"v_max3_f32 v{mx}, v{vals[0]}, v{vals[1]}, v{vals[2]}")
        o(f"v_max3_f32 v{t1_}, v{vals[3]}, v{vals[4]}, v{vals[5]}")
        o(f"v_max3_f32 v{mx}, v{mx}, v{vals[6]}, v{vals[7]}")
        o(f"v_max3_f32 v{t1_}, v{t1_}, v{vals[8]}, v{vals[9]}")
        o(f"v_max3_f32 v{mx}, v{mx}, v{vals[10]}, v{vals[11]}")
        o(f"v_max3_f32 v{t1_}, v{t1_}, v{vals[12]}, v{vals[13]}")
        o(f"v_max3_f32 v{mx}, v{mx}, v{vals[14]}, v{vals[15]}")
        o(f"v_max_f32 v{mx}, v{mx}, v{t1_}")
        if first_chk:
            o(f"s_branch L_rare{u}\nL_back{u}:")
        else:
            o(f"v_cmp_lt_f32 vcc, 0x41000000, v{mx}\n    s_cbranch_vccnz L_rare{u}\nL_back{u}:")
        r = [f"L_rare{u}:"]
        R = lambda x: r.append("    " + x)
        R("s_nop 15")
        R(f"v_mov_b32 v{t1_}, v{mx}")
        R("s_nop 1")
        R(f"v_permlane32_swap_b32 v{mx}, v{t1_}")
        R("s_nop 1")
        R(f"v_max_f32 v{mx}, v{mx}, v{t1_}")
        if not first_chk:
            R(f"v_max_f32 v{mx}, 0, v{mx}")
            R(f"v_sub_f32 v{t1_}, 0, v{mx}")
            R(f"v_exp_f32 v{t1_}, v{t1_}")
        for i in range(16):
            R(f"v_sub_f32 v{NEGM+i}, v{NEGM+i}, v{mx}")
        for i in range(16):
            R(f"v_sub_f32 v{vals[i]}, v{vals[i]}, v{mx}")
        if not first_chk:
            R(f"v_mul_f32 v{vLp}, v{vLp}, v{t1_}")
            R(f"v_mul_f32 v{vLp+1}, v{vLp+1}, v{t1_}")
            for i in range(64):
                R(f"v_mul_f32 v{ACC+i}, v{ACC+i}, v{t1_}")
            for i in range(16):
                R(f"v_mul_f32 v{ss(1-t)+i}, v{ss(1-t)+i}, v{t1_}")
            for x in cvt_ops(1 - t):
                R(x)
        R("s_nop 1")
        R(f"s_branch L_back{u}")
        rare.append("\n".join(r))
        for x in vals[:8]:
            o(f"v_exp_f32 v{x}, v{x}")
        return ops
    def sm_b(t):
        if NOSM: return []
        ops = []
        o = ops.append
        vals = [ss(t) + r for r in range(16)]
        for x in vals[8:]:
            o(f"v_exp_f32 v{x}, v{x}")
        ops += cvt_ops(t)
        if PK:
            for i in range(0, 16, 2):
                o(f"v_pk_add_f32 {vr(vLp,2)}, {vr(vLp,2)}, {vr(vals[i],2)}")
        else:
            for i in range(0, 16, 2):
                o(f"v_add_f32 v{vLp}, v{vLp}, v{vals[i]}")
                o(f"v_add_f32 v{vLp+1}, v{vLp+1}, v{vals[i+1]}")
        return ops

    def group(mm, rd, ops, extra, nwait):
        k = 0
        for j in range(8):
            issued_now = min(2 * j, 8) * RD_PER[0] if rd else 0
            w = (7 - j) * nwait + issued_now
            mm(j)
            if rd and j < 4:
                rd(2 * j); rd(2 * j + 1)
            tgt = ((j + 1) * len(ops)) // 8
            while k < tgt:
                a(ops[k]); k += 1
            if j in extra:
                extra[j]()
    RD_PER = [1]

    NV = 9 if (PF_WO and not BURST) else 8
    a("s_waitcnt vmcnt(0) lgkmcnt(0)" if EARLYR else ("s_waitcnt vmcnt(8)" if BURST == 2 else "s_waitcnt vmcnt(12)"))
    a("s_barrier")
    k_addr()
    for ks in range(8):
        rdk(0, ks)
    a("s_waitcnt lgkmcnt(0)")
    for ks in range(8):
        mmk(0, ks)
    for ks in range(8):
        rdk(1, ks)
    a("s_nop 7")
    a("s_nop 3")
    for o in sm_a(0, True):
        a(o)
    a(f"s_mov_b32 s{sCnt}, 0")
    a.lab("L_at_loop")
    a(f"s_waitcnt vmcnt({NV}) lgkmcnt(0)")
    a("s_barrier")
    v_addr()
    if PF_WO and not BURST: pf_piece()
    pvv = dma_kv_pieces(False)
    pkk = dma_kv_pieces(True)
    RD_PER[0] = 2
    group(lambda j: mmk(1, j), lambda j: rdv(0, j), sm_b(0), {1: pkk[0], 3: pkk[1], 5: pkk[2], 7: pkk[3]}, 0)
    a(f"s_waitcnt vmcnt({NV})")
    a("s_barrier")
    k_addr()
    RD_PER[0] = 1
    a("s_waitcnt lgkmcnt(0)")
    group(lambda j: mmv(0, j), lambda j: rdk(0, j), ["s_nop 3"] + sm_a(1, False), {1: pvv[0], 3: pvv[1], 5: pvv[2], 7: pvv[3]}, 0)
    a(f"s_add_u32 s{sCnt}, s{sCnt}, 1")
    a(f"s_cmp_eq_u32 s{sCnt}, 8")
    a("s_cbranch_scc1 L_at_tail")
    RD_PER[0] = 2
    a("s_waitcnt lgkmcnt(0)")
    group(lambda j: mmk(0, j), lambda j: rdv(1, j), sm_b(1), {}, 0)
    RD_PER[0] = 1
    a("s_waitcnt lgkmcnt(0)")
    a("s_nop 1")
    group(lambda j: mmv(1, j), lambda j: rdk(1, j), ["s_nop 7"] + sm_a(0, False), {}, 0)
    a("s_branch L_at_loop")
    for r in rare:
        a.l.append(r)
    a.lab("L_at_tail")
    a("s_waitcnt lgkmcnt(0)")
    for j in range(8):
        rdv(1, j)
    for o in sm_b(1):
        a(o)
    a("s_waitcnt lgkmcnt(0)")
    a("s_nop 1")
    for j in range(8):
        mmv(1, j)
    stamp(a, 3)
    a("s_nop 7")
    a("s_nop 3")
    l = vLp
    a(f"v_add_f32 v{l}, v{l}, v{l+1}")
    a(f"v_mov_b32 v{vT+1}, v{l}")
    a("s_nop 1")
    a(f"v_permlane32_swap_b32 v{l}, v{vT+1}")
    a("s_nop 1")
    a(f"v_add_f32 v{l}, v{l}, v{vT+1}")
    a(f"v_rcp_f32 v{l}, v{l}")
    a("s_nop 0")
    a(f"s_mov_b32 s{sT1}, 7168")
    a(f"s_mov_b32 s{sT2}, 14336")
    a(f"s_mov_b32 s{sT3}, 21504")
    for T in range(4):
        for s_ in range(2):
            o = FR + (T * 2 + s_) * 4
            x = acc(T) + s_ * 8
            for r in range(8):
                a(f"v_mul_f32 v{x+r}, v{x+r}, v{l}")
            for j in range(4):
                a(f"v_cvt_pk_bf16_f32 v{o+j}, v{x+2*j}, v{x+2*j+1}")
            so = "0" if T == 0 else f"s{sT0+T}"
            a(f"buffer_store_dwordx4 {vr(o,4)}, v{vOst}, {sr(sO,4)}, {so} offen offset:{s_*512} {os.environ.get('OSF','')}")
    a.lab("L_attn_fin")
    if DIAG:
        a("s_waitcnt vmcnt(0)")
        stamp(a, 4)
        diag_dump(a, 52, sW, 128 << 20, 3)
    a.lab("L_attn_end")
    a("s_endpgm")

def gen_oproj(a):
    NST = OP_DEPTH
    assert 32 % NST == 0
    sW = 3
    sOo, sWO, sOUT = 20, 24, 28
    sKo, sKw = 32, 33
    sPo, sPw = 34, 35
    sCnt = 36
    sBig = 39
    sRing = 40
    vLane = 1
    vO0, vO1 = 2, 3
    vWd = 4
    vRd = 8
    g, c = 12, 13
    vT = 14
    ST = 32
    AF = ST + NST * 28
    def of(st, nt): return ST + st * 28 + nt * 4
    def acc(i, nt): return (nt * 4 + i) * 4
    RING = NST * 4096

    a.lab("oproj_kernel")
    a("s_cmp_ge_u32 s2, 256")
    a("s_cbranch_scc1 L_op_end")
    stamp(a, 0)
    if DIAG: a("s_memrealtime s[78:79]")
    a("s_and_b32 s4, s2, 7")
    a("s_lshr_b32 s5, s2, 3")
    a("s_lshr_b32 s6, s4, 2")
    a("s_bfe_u32 s7, s4, 0x10001")
    a("s_lshl_b32 s7, s7, 2")
    a("s_and_b32 s8, s5, 3")
    a("s_add_u32 s7, s7, s8")
    a("s_and_b32 s8, s4, 1")
    a("s_lshl_b32 s8, s8, 3")
    a("s_lshr_b32 s9, s5, 2")
    a("s_add_u32 s8, s8, s9")
    a("s_mul_i32 s9, s6, 40")
    a("s_add_u32 s10, s0, s9")
    a("s_addc_u32 s11, s1, 0")
    a("s_load_dwordx2 s[12:13], s[10:11], 32")
    a("s_load_dwordx2 s[14:15], s[0:1], 80")
    a("s_load_dwordx2 s[16:17], s[0:1], 96")
    a(f"v_and_b32 v{vLane}, 63, v0")
    a("v_lshrrev_b32 v8, 6, v0")
    a("s_nop 0")
    a(f"v_readfirstlane_b32 s{sW}, v8")
    a(f"s_mov_b32 s{sBig}, 0x7f000000")
    a(f"v_lshrrev_b32 v{g}, 4, v{vLane}")
    a(f"v_and_b32 v{c}, 15, v{vLane}")
    a(f"v_lshlrev_b32 v{vO0}, 4, v{vLane}")
    a(f"v_add_u32 v{vO1}, 4096, v{vO0}")
    a(f"s_mul_i32 s{sRing}, s{sW}, {RING}")
    t0, t1, t2 = 20, 21, 22
    a(f"v_lshrrev_b32 v{t0}, 3, v{vLane}")
    a(f"v_bfe_u32 v{t1}, v{vLane}, 4, 2")
    a(f"v_lshlrev_b32 v{t1}, 1, v{t1}")
    a(f"v_and_b32 v{t2}, 7, v{vLane}")
    a(f"v_xor_b32 v{t1}, v{t1}, v{t2}")
    a(f"v_lshlrev_b32 v{t1}, 4, v{t1}")
    a(f"v_lshl_add_u32 v{vWd}, v{t0}, 11, v{t1}")
    for i in range(1, 4):
        a(f"v_add_u32 v{vWd+i}, {i*(8*2048-1024)}, v{vWd}")
    rp, cp = 23, 24
    a(f"v_bfe_u32 v{rp}, v{vLane}, 2, 2")
    a(f"v_and_b32 v{cp}, 3, v{vLane}")
    a(f"v_and_b32 v{t0}, 1, v{g}")
    a(f"v_lshlrev_b32 v{t0}, 1, v{t0}")
    a(f"v_lshrrev_b32 v{t1}, 1, v{rp}")
    a(f"v_add_u32 v{t0}, v{t0}, v{t1}")
    a(f"v_lshlrev_b32 v{t0}, 1, v{t0}")
    a(f"v_lshrrev_b32 v{t1}, 1, v{cp}")
    a(f"v_xor_b32 v{t0}, v{t0}, v{t1}")
    a(f"v_lshlrev_b32 v{t0}, 4, v{t0}")
    a(f"v_and_b32 v{t1}, 1, v{cp}")
    a(f"v_lshl_or_b32 v{t0}, v{t1}, 3, v{t0}")
    a(f"v_and_b32 v{t1}, 1, v{g}")
    a(f"v_lshl_add_u32 v{t1}, v{t1}, 2, v{rp}")
    a(f"v_lshrrev_b32 v{t2}, 1, v{g}")
    a(f"v_lshl_add_u32 v{t1}, v{t2}, 4, v{t1}")
    a(f"v_lshl_add_u32 v{t0}, v{t1}, 7, v{t0}")
    a(f"v_add_u32 v{vRd}, s{sRing}, v{t0}")
    for i in range(1, 4):
        a(f"v_xor_b32 v{vRd+i}, {i<<5}, v{vRd}")
    a("s_waitcnt lgkmcnt(0)")
    a("s_lshl_b32 s9, s6, 3")
    a("s_add_u32 s9, s9, s7")
    a("s_mul_i32 s9, s9, 917504")
    a(f"s_add_u32 s{sOo}, s16, s9")
    a(f"s_addc_u32 s{sOo+1}, s17, 0")
    a(f"s_mov_b32 s{sOo+2}, 917504")
    a(f"s_mov_b32 s{sOo+3}, 0x00020000")
    a("s_lshl_b32 s9, s8, 7")
    a(f"s_add_u32 s{sWO}, s12, s9")
    a(f"s_addc_u32 s{sWO+1}, s13, 0")
    a(f"s_sub_u32 s{sWO+2}, 8388608, s9")
    a(f"s_mov_b32 s{sWO+3}, 0x00020000")
    a("s_mul_i32 s10, s7, 458752")
    a("s_lshl_b32 s11, s6, 11")
    a("s_add_u32 s10, s10, s11")
    a("s_add_u32 s10, s10, s9")
    a(f"s_add_u32 s{sOUT}, s14, s10")
    a(f"s_addc_u32 s{sOUT+1}, s15, 0")
    a(f"s_mov_b32 s{sOUT+2}, {111*4096+128}")
    a(f"s_mov_b32 s{sOUT+3}, 0x00020000")
    a(f"s_mul_i32 s{sKo}, s{sW}, {32*7168}")
    a(f"s_lshl_b32 s{sKw}, s{sW}, 21")

    def ld_wo(st, so):
        a(f"s_add_u32 m0, s{sRing}, {st*4096}")
        a("s_nop 0")
        for i in range(4):
            a(f"buffer_load_dwordx4 v{vWd+i}, {sr(sWO,4)}, s{so} offen offset:{i*1024} {os.environ.get('OPF','')} lds")
    def ld_o(st, so):
        for nt in range(7):
            v = vO0 if nt < 4 else vO1
            a(f"buffer_load_dwordx4 {vr(of(st,nt),4)}, v{v}, {sr(sOo,4)}, s{so} offen offset:{(nt&3)*1024} {os.environ.get('OLF','')}")
    def rd_af(st, buf):
        for i in range(4):
            for hh in range(2):
                a(f"ds_read_b64_tr_b16 {vr(AF+buf*16+i*4+hh*2,2)}, v{vRd+i} offset:{st*4096+hh*1024}")
    for st in range(NST):
        ld_wo(st, sKw)
        ld_o(st, sKo)
        a(f"s_add_u32 s{sKw}, s{sKw}, 65536")
        a(f"s_add_u32 s{sKo}, s{sKo}, 7168")
    for i in range(112):
        a(f"v_accvgpr_write_b32 a{i}, 0")
    stamp(a, 1)
    a(f"s_waitcnt vmcnt({(NST-1)*11+7})")
    rd_af(0, 0)
    a(f"s_mov_b32 s{sCnt}, 0")
    a.lab("L_op_loop")
    for st in range(NST):
        buf = st & 1
        nst = (st + 1) % NST
        a(f"s_cmp_lt_u32 s{sCnt}, {32//NST - 1}")
        a(f"s_cselect_b32 s{sPw}, s{sKw}, s{sBig}")
        a(f"s_cselect_b32 s{sPo}, s{sKo}, s{sBig}")
        a(f"s_waitcnt vmcnt({7+(NST-2)*11}) lgkmcnt(0)")
        ld_wo(st, sPw)
        rd_af(nst, buf ^ 1)
        for nt in range(7):
            for i in range(4):
                a(f"v_mfma_f32_16x16x32_bf16 {ar(acc(i,nt),4)}, {vr(AF+buf*16+i*4,4)}, {vr(of(st,nt),4)}, {ar(acc(i,nt),4)}")
        ld_o(st, sPo)
        a(f"s_add_u32 s{sKw}, s{sKw}, 65536")
        a(f"s_add_u32 s{sKo}, s{sKo}, 7168")
    a(f"s_add_u32 s{sCnt}, s{sCnt}, 1")
    a(f"s_cmp_lt_u32 s{sCnt}, {32//NST}")
    a("s_cbranch_scc1 L_op_loop")
    stamp(a, 2)
    a("s_waitcnt vmcnt(0) lgkmcnt(0)")
    a("s_barrier")
    a(f"v_add_u32 v{vT+3}, 57344, v{vO0}")
    for wv in range(4):
        a(f"s_cmp_lg_u32 s{sW}, {wv}")
        a(f"s_cbranch_scc1 L_epw{wv}")
        for i in range(4):
            if i == wv: continue
            slot = (wv - i - 1) & 3
            base = i * 21504 + slot * 7168
            vb, off = (vO0, base) if base + 6144 < 65536 else (vT + 3, base - 57344)
            if i == 3 or (i == 2):
                pass
            for nt in range(7):
                o_ = base + nt * 1024
                if o_ < 65536:
                    a(f"ds_write_b128 v{vO0}, {ar(acc(i,nt),4)} offset:{o_}")
                else:
                    a(f"ds_write_b128 v{vT+3}, {ar(acc(i,nt),4)} offset:{o_-57344}")
        for nt in range(7):
            for r in range(4):
                a(f"v_accvgpr_read_b32 v{32+nt*4+r}, a{acc(wv,nt)+r}")
        a.lab(f"L_epw{wv}")
    a("s_waitcnt lgkmcnt(0)")
    a("s_barrier")
    a(f"s_mul_i32 s4, s{sW}, 21504")
    a(f"v_add_u32 v{vT}, s4, v{vO0}")
    a(f"v_lshlrev_b32 v{vT+2}, 12, v{c}")
    a(f"v_lshl_add_u32 v{vT+2}, v{g}, 3, v{vT+2}")
    a(f"s_lshl_b32 s4, s{sW}, 5")
    a(f"v_add_u32 v{vT+2}, s4, v{vT+2}")
    R = 64
    for nt in range(7):
        for sl in range(3):
            a(f"ds_read_b128 {vr(R+(nt*3+sl)*4,4)}, v{vT} offset:{sl*7168+nt*1024}")
    for nt in range(7):
        a(f"s_waitcnt lgkmcnt({min(15, (6-nt)*3)})")
        for r in range(4):
            x = 32 + nt * 4 + r
            b0 = R + nt * 12 + r
            a(f"v_add_f32 v{b0}, v{b0}, v{b0+4}")
            a(f"v_add_f32 v{x}, v{x}, v{b0+8}")
            a(f"v_add_f32 v{x}, v{x}, v{b0}")
        x = 32 + nt * 4
        O = 160 + nt * 2
        a(f"v_cvt_pk_bf16_f32 v{O}, v{x}, v{x+1}")
        a(f"v_cvt_pk_bf16_f32 v{O+1}, v{x+2}, v{x+3}")
        a(f"s_mov_b32 s5, {nt*65536}")
        a(f"buffer_store_dwordx2 {vr(O,2)}, v{vT+2}, {sr(sOUT,4)}, s5 offen {os.environ.get('OUTF','')}")
    a.lab("L_op_fin")
    if DIAG:
        a("s_waitcnt vmcnt(0)")
        stamp(a, 3)
        diag_dump(a, 16, sW, 129 << 20)
    a.lab("L_op_end")
    a("s_endpgm")
    return AF + 32


HEADER = open("cdna_kernels/" + NAME + ".s.ref").read().split("; Override launch")[0]

def kd(name, vgpr, accum, sgpr=102):
    return f""".amdhsa_kernel {name}
  .amdhsa_next_free_vgpr {vgpr}
  .amdhsa_next_free_sgpr {sgpr}
  .amdhsa_accum_offset {accum}
  .amdhsa_group_segment_fixed_size 0
  .amdhsa_kernarg_size 104
  .amdhsa_user_sgpr_count 2
  .amdhsa_user_sgpr_kernarg_segment_ptr 1
  .amdhsa_system_sgpr_workgroup_id_x 1
.end_amdhsa_kernel
"""

def main():
    out = HEADER
    out += "; @launch kernel=attn_kernel grid=(256,1,1) block=(512,1,1) lds=163840\n"
    out += "; @launch kernel=oproj_kernel grid=(256,1,1) block=(256,1,1) lds=114688\n"
    out += '.amdgcn_target "amdgcn-amd-amdhsa--gfx950"\n.text\n'
    for name, fn in (("attn_kernel", gen_attn), ("oproj_kernel", gen_oproj)):
        a = A()
        fn(a)
        out += f".globl {name}\n.p2align 8\n.type {name},@function\n" + a.text()
    out += '.section .rodata,"a"\n.p2align 6\n'
    out += kd("attn_kernel", 256, 256)
    out += ".p2align 6\n"
    out += kd("oproj_kernel", 368, 256)
    path = sys.argv[1] if len(sys.argv) > 1 else "cdna_kernels/" + NAME + ".s"
    open(path, "w").write(out)

if __name__ == "__main__":
    main()
```

```python
import sys, os, struct
DIAG = int(os.environ.get("DIAG", "0"))
NAME = "concat_heads__mha_block_cached__mha_block_cached__near_ridge"
PF_WQ = int(os.environ.get("PF_WQ", "1"))
PF_WO = int(os.environ.get("PF_WO", "1"))
OP_DEPTH = int(os.environ.get("OP_DEPTH", "4"))
PRIO = int(os.environ.get("PRIO", "1"))

class A:
    def __init__(self):
        self.l = []
    def __call__(self, s):
        self.l.append("    " + s)
    def lab(self, s):
        self.l.append(s + ":")
    def text(self):
        return "\n".join(self.l) + "\n"

def vr(a, n):
    return f"v[{a}:{a+n-1}]" if n > 1 else f"v{a}"
def ar(a, n):
    return f"a[{a}:{a+n-1}]" if n > 1 else f"a{a}"
def sr(a, n):
    return f"s[{a}:{a+n-1}]" if n > 1 else f"s{a}"

SCALE_C = 0.08838834764831845 * 1.4426950408889634
def f32bits(x):
    return struct.unpack("<I", struct.pack("<f", x))[0]

def stamp(a, i):
    if DIAG:
        a("s_waitcnt lgkmcnt(0)")
        a(f"s_mem{'real' if DIAG == 2 else ''}time s[{60+2*i}:{61+2*i}]")
        a("s_waitcnt lgkmcnt(0)")
def diag_dump(a, wsreg, sW, region, lg=2):
    if not DIAG: return
    if DIAG == 2:
        u = region
        a(f"s_cmp_lg_u32 s{sW}, 0")
        a(f"s_cbranch_scc1 L_dd{u}")
        a("s_mul_i32 s84, s2, 851")
        a("s_lshr_b32 s84, s84, 16")
        a("s_mul_i32 s85, s84, 77")
        a("s_cmp_lg_u32 s85, s2")
        a(f"s_cbranch_scc1 L_dd{u}")
        a("s_load_dwordx2 s[88:89], s[0:1], 88")
        a("s_waitcnt lgkmcnt(0)")
        a("s_mov_b32 s90, 256")
        a("s_mov_b32 s91, 0x00020000")
        a("s_lshl_b32 s84, s84, 4")
        a("v_mov_b32 v1, s84")
        for i in range(4):
            a(f"s_sub_u32 s85, s{62+2*i}, s{60+2*i}")
            a("v_mov_b32 v2, s85")
            a(f"buffer_store_dword v2, v1, s[88:91], 0 offen offset:{i*4}")
            a("s_waitcnt vmcnt(0)")
        a.lab(f"L_dd{u}")
        return
    a("s_memrealtime s[80:81]")
    a("s_getreg_b32 s82, hwreg(HW_REG_HW_ID)")
    a("s_getreg_b32 s83, hwreg(HW_REG_XCC_ID)")
    a("s_waitcnt lgkmcnt(0)")
    a(f"s_lshl_b32 s84, s2, {lg}")
    a(f"s_add_u32 s84, s84, s{sW}")
    a(f"s_lshl_b32 s84, s84, 7")
    a(f"s_add_u32 s84, s84, {region}")
    a(f"s_add_u32 s88, s{wsreg}, s84")
    a(f"s_addc_u32 s89, s{wsreg+1}, 0")
    a("s_mov_b32 s90, 128")
    a("s_mov_b32 s91, 0x00020000")
    a("v_mov_b32 v1, 0")
    for i in range(24):
        a(f"v_mov_b32 v2, s{60+i}")
        a(f"buffer_store_dword v2, v1, s[88:91], 0 offen offset:{i*4}")
        a("s_waitcnt vmcnt(0)")

class VM:
    def __init__(self):
        self.ops = []
    def issue(self, tag, n):
        self.ops += [tag] * n
    def need(self, *tags):
        last = max(i for i, t in enumerate(self.ops) if t in tags)
        for t in tags:
            assert t in self.ops, t
        return len(self.ops) - 1 - last

KVF = os.environ.get("KVF", "")
WQF = os.environ.get("WQF", "")
KV_START = int(os.environ.get("KV_START", "20"))

def gen_attn(a):
    PK = int(os.environ.get("PK", "1"))
    STAG = int(os.environ.get("STAG", "0"))
    sW = 3
    sWq = 99
    sE = 96
    sX, sWQ, sK, sV, sO, sWO = 20, 24, 28, 32, 36, 56
    sSlotR, sSlotW = 40, 41
    sM0kv = 42
    sWQoff = 43
    sXoff = 44
    sKVoff = 45
    sCnt = 46
    sC = 47
    sT0, sT1, sT2, sT3 = 48, 49, 50, 51
    sM0q = 92
    sM0x = 93
    vLane = 1
    vWQd = 2
    vXd = 4
    vKd = 6
    vVd = 10
    vA0k, vA0v = 11, 12
    vOst = 13
    vAd = 14
    vAv = 22
    vM = 26
    vLp = 28
    vT = 30
    vPFd = 44
    vP = 48
    ACC = 64
    FR = 128
    QF = 192
    SS = 224
    QB = [128, 160]
    XB = [192, 208]
    WQ0, X0 = 65536, 131072
    MF = "v_mfma_f32_32x32x16_bf16"

    def acc(T): return ACC + T * 16
    def ss(t): return SS + t * 16
    def pf(t, s_): return vP + (t * 2 + s_) * 4

    a.lab("attn_kernel")
    a("s_cmp_ge_u32 s2, 256")
    a("s_cbranch_scc1 L_attn_end")
    stamp(a, 0)
    if DIAG: a("s_memrealtime s[78:79]")
    a("s_and_b32 s4, s2, 7")
    a("s_lshr_b32 s5, s2, 3")
    a("s_lshr_b32 s6, s4, 2")
    a("s_and_b32 s7, s4, 3")
    a("s_lshl_b32 s7, s7, 2")
    a("s_and_b32 s8, s5, 3")
    a("s_add_u32 s7, s7, s8")
    a("s_lshr_b32 s8, s5, 2")
    a("s_mul_i32 s9, s6, 40")
    a("s_add_u32 s10, s0, s9")
    a("s_addc_u32 s11, s1, 0")
    a("s_load_dwordx8 s[12:19], s[10:11], 0")
    a("s_load_dwordx2 s[94:95], s[10:11], 32")
    a("s_load_dwordx2 s[52:53], s[0:1], 96")
    a(f"v_and_b32 v{vLane}, 63, v0")
    a("v_lshrrev_b32 v2, 6, v0")
    a("s_nop 0")
    a(f"v_readfirstlane_b32 s{sW}, v2")
    a(f"s_mov_b32 s{sC}, 0x{f32bits(SCALE_C):08x}")
    a(f"s_mov_b32 s100, 0x{f32bits(SCALE_C):08x}")
    a(f"s_mov_b32 s101, 0x{f32bits(SCALE_C):08x}")
    g, c, rp, cp, hh_, m_ = 36, 37, 38, 39, 42, 43
    t0, t1 = 40, 41
    a(f"v_lshrrev_b32 v{g}, 4, v{vLane}")
    a(f"v_and_b32 v{c}, 15, v{vLane}")
    a(f"v_bfe_u32 v{rp}, v{vLane}, 2, 2")
    a(f"v_and_b32 v{cp}, 3, v{vLane}")
    a(f"v_lshrrev_b32 v{hh_}, 5, v{vLane}")
    a(f"v_and_b32 v{m_}, 31, v{vLane}")
    a(f"s_and_b32 s{sWq}, s{sW}, 3")
    a(f"s_lshr_b32 s{sE}, s{sW}, 2")
    a(f"s_lshl_b32 s{sM0kv}, s{sW}, 12")
    a(f"s_lshl_b32 s{sM0q}, s{sW}, 11")
    a(f"s_add_u32 s{sM0x}, s{sM0q}, {X0}")
    a(f"s_add_u32 s{sM0q}, s{sM0q}, {WQ0}")
    a(f"v_lshlrev_b32 v{t1}, 2, v{hh_}")
    a(f"v_xor_b32 v{t1}, v{t1}, v{c}")
    a(f"v_lshlrev_b32 v{t1}, 4, v{t1}")
    a(f"v_lshl_add_u32 v{t1}, v{hh_}, 13, v{t1}")
    a(f"v_and_b32 v{t0}, 1, v{g}")
    a(f"v_lshl_add_u32 v{t1}, v{t0}, 8, v{t1}")
    a(f"s_lshl_b32 s{sT0}, s{sW}, 15")
    a(f"v_add_u32 v{vWQd}, s{sT0}, v{t1}")
    a(f"v_xor_b32 v{t1}, 128, v{vWQd}")
    a(f"v_add_u32 v{vWQd+1}, {2*8192-1024}, v{t1}")
    a(f"v_and_b32 v{t1}, 7, v{vLane}")
    a(f"v_xor_b32 v{t0}, v{g}, v{t1}")
    a(f"v_lshlrev_b32 v{t0}, 4, v{t0}")
    a(f"v_lshrrev_b32 v{t1}, 3, v{vLane}")
    a(f"v_lshl_add_u32 v{t0}, v{t1}, 11, v{t0}")
    a(f"v_add_u32 v{vXd}, s{sT0}, v{t0}")
    a(f"v_xor_b32 v{t0}, 64, v{vXd}")
    a(f"v_add_u32 v{vXd+1}, {8*2048-1024}, v{t0}")
    a("s_waitcnt lgkmcnt(0)")
    a("s_mul_i32 s9, s8, 229376")
    a(f"s_add_u32 s{sX}, s12, s9")
    a(f"s_addc_u32 s{sX+1}, s13, 0")
    a(f"s_mov_b32 s{sX+2}, 229376")
    a(f"s_mov_b32 s{sX+3}, 0x00020000")
    a("s_lshl_b32 s9, s7, 9")
    a(f"s_add_u32 s{sWQ}, s18, s9")
    a(f"s_addc_u32 s{sWQ+1}, s19, 0")
    a(f"s_sub_u32 s{sWQ+2}, 8388608, s9")
    a(f"s_mov_b32 s{sWQ+3}, 0x00020000")
    a(f"s_mov_b32 s{sWQoff}, 0")
    a(f"s_mov_b32 s{sXoff}, 0")

    vm = VM()
    XF = os.environ.get("XF", "")
    def wq_pieces(cn):
        q = cn & 3
        def p0():
            a(f"s_add_u32 m0, s{sM0q}, {q*16384}")
            a("s_nop 0")
            a(f"buffer_load_dwordx4 v{vWQd}, {sr(sWQ,4)}, s{sWQoff} offen {WQF} lds")
            vm.issue(("wq", cn), 1)
        def p1():
            a(f"s_add_u32 m0, s{sM0q}, {q*16384}")
            a("s_nop 0")
            a(f"buffer_load_dwordx4 v{vWQd+1}, {sr(sWQ,4)}, s{sWQoff} offen offset:1024 {WQF} lds")
            if not os.environ.get("NOADV"): a(f"s_add_u32 s{sWQoff}, s{sWQoff}, {32*8192}")
            vm.issue(("wq", cn), 1)
        return [p0, p1]
    def x_pieces(m):
        q = m & 1
        def p0():
            a(f"s_add_u32 m0, s{sM0x}, {q*16384}")
            a("s_nop 0")
            a(f"buffer_load_dwordx4 v{vXd}, {sr(sX,4)}, s{sXoff} offen {XF} lds")
            vm.issue(("x", m), 1)
        def p1():
            a(f"s_add_u32 m0, s{sM0x}, {q*16384}")
            a("s_nop 0")
            a(f"buffer_load_dwordx4 v{vXd+1}, {sr(sX,4)}, s{sXoff} offen offset:1024 {XF} lds")
            if not os.environ.get("NOADV"): a(f"s_add_u32 s{sXoff}, s{sXoff}, 128")
            vm.issue(("x", m), 1)
        return [p0, p1]
    def kv_voff(isK, i):
        return vKd + i if isK else vVd
    def kv_pieces(n):
        isK = n % 2 == 0
        srd = sK if isK else sV
        out = []
        for i in range(4):
            def p(i=i):
                a(f"s_add_u32 m0, s{sM0kv}, {n*32768}")
                a(f"s_mov_b32 s{sT0}, {(n>>1)*16384}")
                a(f"buffer_load_dwordx4 v{kv_voff(isK,i)}, {sr(srd,4)}, s{sT0} offen offset:{i*1024} {KVF} lds")
                vm.issue(("kv", n), 1)
            out.append(p)
        return out

    for p in x_pieces(0) + wq_pieces(0) + wq_pieces(1) + x_pieces(1) + wq_pieces(2) + wq_pieces(3):
        p()

    a(f"v_bfe_u32 v{t0}, v{m_}, 1, 3")
    a(f"v_xor_b32 v{t0}, v{t0}, v{hh_}")
    a(f"v_lshlrev_b32 v{t0}, 4, v{t0}")
    a(f"v_lshl_add_u32 v{t0}, v{m_}, 7, v{t0}")
    a(f"s_lshl_b32 s{sT0}, s{sWq}, 12")
    a(f"s_add_u32 s{sT0}, s{sT0}, {X0}")
    a(f"v_add_u32 v{vAd+4}, s{sT0}, v{t0}")
    for k in range(1, 4):
        a(f"v_xor_b32 v{vAd+4+k}, {k<<5}, v{vAd+4}")
    a(f"v_and_b32 v{t0}, 1, v{g}")
    a(f"v_and_b32 v{t1}, 1, v{cp}")
    a(f"v_lshl_or_b32 v{t0}, v{t0}, 1, v{t1}")
    a(f"v_lshl_or_b32 v{t0}, v{rp}, 2, v{t0}")
    a(f"v_lshlrev_b32 v{t0}, 4, v{t0}")
    a(f"v_lshrrev_b32 v{t1}, 1, v{cp}")
    a(f"v_lshl_or_b32 v{t0}, v{t1}, 3, v{t0}")
    a(f"v_lshl_add_u32 v{t1}, v{hh_}, 3, v{rp}")
    a(f"v_lshl_add_u32 v{t0}, v{t1}, 9, v{t0}")
    a(f"s_lshl_b32 s{sT0}, s{sE}, 8")
    a(f"s_add_u32 s{sT0}, s{sT0}, {WQ0}")
    a(f"v_add_u32 v{vAd}, s{sT0}, v{t0}")
    for k in range(1, 4):
        a(f"v_xor_b32 v{vAd+k}, {k<<6}, v{vAd}")
    a(f"s_lshl_b32 s{sT0}, s{sWq}, 12")
    a(f"v_xor_b32 v{t0}, v{g}, v{c}")
    a(f"v_lshlrev_b32 v{t0}, 4, v{t0}")
    a(f"v_lshl_add_u32 v{t0}, v{g}, 8, v{t0}")
    a(f"v_add_u32 v{vKd}, s{sT0}, v{t0}")
    for i in range(1, 4):
        a(f"v_xor_b32 v{vKd+i}, {i<<6}, v{vKd}")
    a(f"v_lshlrev_b32 v{t0}, 2, v{g}")
    a(f"v_xor_b32 v{t0}, v{t0}, v{c}")
    a(f"v_lshlrev_b32 v{t0}, 4, v{t0}")
    a(f"v_lshl_add_u32 v{t0}, v{g}, 8, v{t0}")
    a(f"v_add_u32 v{vVd}, s{sT0}, v{t0}")
    a(f"s_lshl_b32 s{sT1}, s{sE}, 14")
    a(f"v_xor_b32 v{t0}, v{hh_}, v{c}")
    a(f"v_lshlrev_b32 v{t0}, 4, v{t0}")
    a(f"v_lshl_add_u32 v{t0}, v{m_}, 8, v{t0}")
    a(f"v_add_u32 v{vA0k}, s{sT1}, v{t0}")
    a(f"v_and_b32 v{t0}, 1, v{g}")
    a(f"v_lshrrev_b32 v{t1}, 1, v{cp}")
    a(f"v_lshl_or_b32 v{t0}, v{t0}, 1, v{t1}")
    a(f"v_lshl_or_b32 v{t0}, v{rp}, 2, v{t0}")
    a(f"v_lshlrev_b32 v{t0}, 4, v{t0}")
    a(f"v_and_b32 v{t1}, 1, v{cp}")
    a(f"v_lshl_or_b32 v{t0}, v{t1}, 3, v{t0}")
    a(f"v_lshl_add_u32 v{t1}, v{hh_}, 2, v{rp}")
    a(f"v_lshl_add_u32 v{t0}, v{t1}, 8, v{t0}")
    a(f"v_add_u32 v{vA0v}, s{sT1}, v{t0}")
    a(f"v_and_b32 v{t0}, 1, v{g}")
    a(f"v_lshlrev_b32 v{t0}, 10, v{t0}")
    a(f"v_lshl_add_u32 v{t0}, v{hh_}, 8, v{t0}")
    a(f"v_lshl_add_u32 v{t0}, v{c}, 4, v{t0}")
    a(f"s_lshl_b32 s{sT0}, s{sWq}, 11")
    a(f"v_add_u32 v{t0}, s{sT0}, v{t0}")
    a(f"v_mov_b32 v{t1}, 0x40000000")
    a(f"v_cmp_gt_u32 vcc, 7168, v{t0}")
    a("s_nop 1")
    a(f"v_cndmask_b32 v{vOst}, v{t1}, v{t0}, vcc")
    a(f"v_lshlrev_b32 v27, 4, v{vLane}")
    a("s_lshl_b32 s7, s7, 1")
    a(f"s_add_u32 s7, s7, s{sE}")
    a("s_lshl_b32 s9, s8, 5")
    a("s_add_u32 s9, s9, s7")
    a("s_lshl_b32 s10, s9, 15")
    a("s_lshl_b32 s9, s9, 17")
    a(f"s_add_u32 s{sK}, s14, s9")
    a(f"s_addc_u32 s{sK+1}, s15, 0")
    a(f"s_mov_b32 s{sK+2}, 131072")
    a(f"s_mov_b32 s{sK+3}, 0x00020000")
    a(f"s_add_u32 s{sV}, s16, s9")
    a(f"s_addc_u32 s{sV+1}, s17, 0")
    a(f"s_mov_b32 s{sV+2}, 131072")
    a(f"s_mov_b32 s{sV+3}, 0x00020000")
    a(f"s_add_u32 s{sWO}, s94, s10")
    a(f"s_addc_u32 s{sWO+1}, s95, 0")
    a(f"s_mov_b32 s{sWO+2}, 32768")
    a(f"s_mov_b32 s{sWO+3}, 0x00020000")
    a("s_lshl_b32 s9, s6, 3")
    a("s_add_u32 s9, s9, s8")
    a("s_lshl_b32 s9, s9, 7")
    a("s_lshl_b32 s10, s7, 2")
    a("s_add_u32 s9, s9, s10")
    a("s_mul_i32 s9, s9, 7168")
    a(f"s_add_u32 s{sO}, s52, s9")
    a(f"s_addc_u32 s{sO+1}, s53, 0")
    a(f"s_mov_b32 s{sO+2}, 28672")
    a(f"s_mov_b32 s{sO+3}, 0x00020000")
    a(f"s_mov_b32 s{sSlotR}, 0")
    a(f"s_mov_b32 s{sSlotW}, 131072")
    a(f"s_mov_b32 s{sKVoff}, 32768")
    for i in range(64):
        a(f"v_mov_b32 v{ACC+i}, 0")

    def q_rd_x(m):
        xb = m & 1
        for k in range(4):
            a(f"ds_read_b128 {vr(XB[xb]+k*4,4)}, v{vAd+4+k} offset:{(m&1)*16384}")
    def q_rd(buf, f, q):
        ks, mt = f >> 2, f & 3
        for hh in range(2):
            a(f"ds_read_b64_tr_b16 {vr(QB[buf]+f*4+hh*2,2)}, v{vAd+mt} offset:{q*16384+ks*8192+hh*2048}")
    def q_mm(buf, f, xb, par):
        ks, mt = f >> 2, f & 3
        a(f"{MF} {vr(acc(mt),16)}, {vr(QB[buf]+f*4,4)}, {vr(XB[xb]+(par*2+ks)*4,4)}, {vr(acc(mt),16)}")

    stamp(a, 1)
    a(f"s_waitcnt vmcnt({vm.need(('x',0),('wq',0))})")
    a("s_barrier")
    q_rd_x(0)
    for f in range(8):
        q_rd(0, f, 0)

    kvq = kv_pieces(0) + kv_pieces(1)
    kv_sched = {}
    nit = 29 - KV_START
    for idx, p in enumerate(kvq):
        it = KV_START + (idx * nit) // len(kvq)
        kv_sched.setdefault(it, []).append(p)
    sPF = 98
    a(f"s_lshl_b32 s{sPF}, s{sWq}, 13")
    def pf_piece():
        a(f"buffer_load_dword v26, v27, {sr(sWO,4)}, s{sPF} offen")
        a(f"s_add_u32 s{sPF}, s{sPF}, 1024")
        vm.issue("pf", 1)
    PFD = 24 if False else 26
    EARLYR = int(os.environ.get("EARLYR", "0"))
    BURST = int(os.environ.get("BURST", "0"))
    if EARLYR:
        EREG = {2: SS, 3: SS + 16}
        def kvr_pieces(n):
            isK = n % 2 == 0
            srd = sK if isK else sV
            out = []
            for i in range(4):
                def p(i=i):
                    a(f"s_mov_b32 s{sT0}, {(n>>1)*16384}")
                    a(f"buffer_load_dwordx4 {vr(EREG[n]+i*4,4)}, v{kv_voff(isK,i)}, {sr(srd,4)}, s{sT0} offen offset:{i*1024} {KVF}")
                    vm.issue(("kvr", n), 1)
                out.append(p)
            return out
        def wr_pieces(n):
            def p():
                a(f"s_waitcnt vmcnt({vm.need(('kvr', n))})")
                a(f"s_add_u32 s{sT0}, s{sM0kv}, {n*32768}")
                a(f"v_add_u32 v{vT}, s{sT0}, v27")
                for i in range(4):
                    a(f"ds_write_b128 v{vT}, {vr(EREG[n]+i*4,4)} offset:{i*1024}")
            return [p]
        kv_sched = {}
        kvq = kv_pieces(0) + kv_pieces(1) + kvr_pieces(2) + kvr_pieces(3)
        nit = 28 - KV_START
        for idx, p in enumerate(kvq):
            it = KV_START + (idx * nit) // len(kvq)
            kv_sched.setdefault(it, []).append(p)
        kv_sched.setdefault(29, []).extend(wr_pieces(2))
        kv_sched.setdefault(31, []).extend(wr_pieces(3))
    elif BURST:
        kv_sched = {}
        if BURST == 1:
            for idx, p in enumerate(kvq):
                it = KV_START + (idx * nit) // len(kvq)
                kv_sched.setdefault(it, []).append(p)
        kv_sched.setdefault(29, []).extend(kv_pieces(2))
        kv_sched.setdefault(31, []).extend(kv_pieces(3))
    else:
        if PF_WO: kv_sched.setdefault(29, []).append(pf_piece)
        kv_sched.setdefault(29, []).extend(kv_pieces(2))
        kv_sched.setdefault(31, []).extend(kv_pieces(3))
    sPhase, sRelax = 90, 91
    NB = 8 if BURST == 1 else 16
    if BURST:
        a("s_lshr_b32 s9, s2, 3")
        a("s_mul_i32 s10, s9, 52")
        a("s_lshr_b32 s10, s10, 8")
        a("s_mul_i32 s10, s10, 5")
        a(f"s_sub_u32 s{sPhase}, s9, s10")
        a(f"s_mov_b32 s{sRelax}, 0")

    def q_iter(cn):
        buf = cn & 1
        m = cn >> 1
        xb = m & 1
        has_next = cn < 31
        needs = []
        if has_next: needs.append(("wq", cn + 1))
        if cn % 2 == 1 and m + 1 <= 15: needs.append(("x", m + 1))
        w = vm.need(*needs) if needs else None
        if BURST and cn < KV_START:
            lid = f"{cn&3}"
            a(f"s_cmp_lg_u32 s{sRelax}, 0")
            a(f"s_cbranch_scc1 L_rlx{lid}")
            a(f"s_waitcnt vmcnt({w}) lgkmcnt(0)")
            a(f"s_branch L_go{lid}")
            a.lab(f"L_rlx{lid}")
            a(f"s_waitcnt vmcnt({w+NB}) lgkmcnt(0)")
            a(f"s_sub_u32 s{sRelax}, s{sRelax}, 1")
            a.lab(f"L_go{lid}")
        elif w is not None:
            a(f"s_waitcnt vmcnt({w}) lgkmcnt(0)")
        else:
            a("s_waitcnt lgkmcnt(0)")
        a("s_barrier")
        if BURST and cn < KV_START and (cn & 3) == 0:
            a(f"s_cmp_lg_u32 s{sCnt}, s{sPhase}")
            a("s_cbranch_scc1 L_noburst")
            sv = list(vm.ops)
            if BURST == 2:
                for p in kv_pieces(0) + kv_pieces(1): p()
            for i in range(8): pf_piece()
            vm.ops = sv
            a(f"s_mov_b32 s{sRelax}, 2")
            a.lab("L_noburst")
        pieces = []
        if cn % 2 == 0 and m + 2 <= 15: pieces += x_pieces(m + 2)
        if cn + 4 <= 31: pieces += wq_pieces(cn + 4)
        pieces += kv_sched.get(cn, [])
        slots = {}
        for i, p in enumerate(pieces):
            slots.setdefault((i * 8) // max(len(pieces), 1), []).append(p)
        rds = []
        if has_next:
            rds += [(lambda f=f: q_rd(buf ^ 1, f, (cn + 1) & 3)) for f in range(8)]
        if cn % 2 == 1 and m + 1 <= 15:
            rds.append(lambda: q_rd_x(m + 1))
        RPM = int(os.environ.get("RPM", "2"))
        for f in range(8):
            q_mm(buf, f, xb, cn & 1)
            for r_ in rds[f*RPM:(f+1)*RPM]:
                r_()
            for p in slots.get(f, []):
                p()
        return w

    ngrp = KV_START // 4
    a(f"s_mov_b32 s{sCnt}, 0")
    a.lab("L_qp_loop")
    ws0 = [q_iter(cn) for cn in range(4)]
    a(f"s_add_u32 s{sCnt}, s{sCnt}, 1")
    a(f"s_cmp_lt_u32 s{sCnt}, {ngrp}")
    a("s_cbranch_scc1 L_qp_loop")
    save = a.l
    for gI in range(1, ngrp):
        a.l = []
        wsg = [q_iter(gI * 4 + k) for k in range(4)]
        assert wsg == ws0, (wsg, ws0)
    a.l = save
    for cn in range(KV_START, 32):
        q_iter(cn)

    stamp(a, 2)
    a("s_nop 7")
    a("s_nop 3")
    NEGM = 32
    for mt in range(4):
        for s_ in range(2):
            q = QF + (mt * 2 + s_) * 4
            x = acc(mt) + s_ * 8
            for j in range(8):
                a(f"v_mul_f32 v{x+j}, s{sC}, v{x+j}")
            for j in range(4):
                a(f"v_cvt_pk_bf16_f32 v{q+j}, v{x+2*j}, v{x+2*j+1}")
    for i in range(64):
        a(f"v_mov_b32 v{ACC+i}, 0")
    for i in range(16):
        a(f"v_mov_b32 v{NEGM+i}, 0")
    a(f"v_mov_b32 v{vLp}, 0")
    a(f"v_mov_b32 v{vLp+1}, 0")
    sFirst = 97
    a(f"s_mov_b32 s{sFirst}, 1")

    def adv_slot(s):
        a(f"s_add_u32 s{s}, s{s}, 32768")
        a(f"s_cmp_ge_u32 s{s}, 163840")
        a(f"s_cselect_b32 s{s}, 0, s{s}")
    def dma_kv_pieces(isK):
        srd = sK if isK else sV
        out = []
        for i in range(4):
            def p(i=i):
                a(f"s_add_u32 m0, s{sSlotW}, s{sM0kv}")
                a("s_nop 0")
                if not os.environ.get("X_NODMA"): a(f"buffer_load_dwordx4 v{kv_voff(isK,i)}, {sr(srd,4)}, s{sKVoff} offen offset:{i*1024} {KVF} lds")
                if i == 3:
                    if not isK and not os.environ.get("NOADVKV"):
                        a(f"s_add_u32 s{sKVoff}, s{sKVoff}, 16384")
                    adv_slot(sSlotW)
            out.append(p)
        return out
    def k_addr():
        a(f"v_add_u32 v{vAd}, s{sSlotR}, v{vA0k}")
        for ks in range(1, 8):
            a(f"v_xor_b32 v{vAd+ks}, {ks<<5}, v{vAd}")
        adv_slot(sSlotR)
    def v_addr():
        a(f"v_add_u32 v{vAv}, s{sSlotR}, v{vA0v}")
        for T in range(1, 4):
            a(f"v_xor_b32 v{vAv+T}, {T<<6}, v{vAv}")
        adv_slot(sSlotR)
    XR_, YR_ = FR, FR + 32
    def rdk(t, ks):
        if not os.environ.get("X_NOLDS"): a(f"ds_read_b128 {vr(XR_+ks*4,4)}, v{vAd+ks} offset:{t*8192}")
    def rdv(t, j):
        s_, T = j >> 2, j & 3
        for hh in range(2):
            if not os.environ.get("X_NOLDS"): a(f"ds_read_b64_tr_b16 {vr(YR_+j*4+hh*2,2)}, v{vAv+T} offset:{(t*32+s_*16+hh*8)*256}")
    def mmk(t, ks):
        cin = vr(NEGM,16) if ks == 0 else vr(ss(t),16)
        a(f"{MF} {vr(ss(t),16)}, {vr(XR_+ks*4,4)}, {vr(QF+ks*4,4)}, {cin}")
    def mmv(t, j):
        s_, T = j >> 2, j & 3
        a(f"{MF} {vr(acc(T),16)}, {vr(YR_+j*4,4)}, {vr(pf(t,s_),4)}, {vr(acc(T),16)}")
    def cvt_ops(t):
        ops = []
        for s_ in range(2):
            p = pf(t, s_)
            x = ss(t) + s_ * 8
            for j in range(4):
                ops.append(f"v_cvt_pk_bf16_f32 v{p+j}, v{x+2*j}, v{x+2*j+1}")
        return ops
    NOSM = os.environ.get("X_NOSM")
    uid = [0]
    rare = []
    def sm_a(t, first_chk):
        if NOSM: return []
        uid[0] += 1
        u = uid[0]
        ops = []
        o = ops.append
        vals = [ss(t) + r for r in range(16)]
        mx, t1_ = vT, vT + 1
        o(f"v_max3_f32 v{mx}, v{vals[0]}, v{vals[1]}, v{vals[2]}")
        o(f"v_max3_f32 v{t1_}, v{vals[3]}, v{vals[4]}, v{vals[5]}")
        o(f"v_max3_f32 v{mx}, v{mx}, v{vals[6]}, v{vals[7]}")
        o(f"v_max3_f32 v{t1_}, v{t1_}, v{vals[8]}, v{vals[9]}")
        o(f"v_max3_f32 v{mx}, v{mx}, v{vals[10]}, v{vals[11]}")
        o(f"v_max3_f32 v{t1_}, v{t1_}, v{vals[12]}, v{vals[13]}")
        o(f"v_max3_f32 v{mx}, v{mx}, v{vals[14]}, v{vals[15]}")
        o(f"v_max_f32 v{mx}, v{mx}, v{t1_}")
        if first_chk:
            o(f"s_branch L_rare{u}\nL_back{u}:")
        else:
            o(f"v_cmp_lt_f32 vcc, 0x41000000, v{mx}\n    s_cbranch_vccnz L_rare{u}\nL_back{u}:")
        r = [f"L_rare{u}:"]
        R = lambda x: r.append("    " + x)
        R("s_nop 15")
        R(f"v_mov_b32 v{t1_}, v{mx}")
        R("s_nop 1")
        R(f"v_permlane32_swap_b32 v{mx}, v{t1_}")
        R("s_nop 1")
        R(f"v_max_f32 v{mx}, v{mx}, v{t1_}")
        if not first_chk:
            R(f"v_max_f32 v{mx}, 0, v{mx}")
            R(f"v_sub_f32 v{t1_}, 0, v{mx}")
            R(f"v_exp_f32 v{t1_}, v{t1_}")
        for i in range(16):
            R(f"v_sub_f32 v{NEGM+i}, v{NEGM+i}, v{mx}")
        for i in range(16):
            R(f"v_sub_f32 v{vals[i]}, v{vals[i]}, v{mx}")
        if not first_chk:
            R(f"v_mul_f32 v{vLp}, v{vLp}, v{t1_}")
            R(f"v_mul_f32 v{vLp+1}, v{vLp+1}, v{t1_}")
            for i in range(64):
                R(f"v_mul_f32 v{ACC+i}, v{ACC+i}, v{t1_}")
            for i in range(16):
                R(f"v_mul_f32 v{ss(1-t)+i}, v{ss(1-t)+i}, v{t1_}")
            for x in cvt_ops(1 - t):
                R(x)
        R("s_nop 1")
        R(f"s_branch L_back{u}")
        rare.append("\n".join(r))
        for x in vals[:8]:
            o(f"v_exp_f32 v{x}, v{x}")
        return ops
    def sm_b(t):
        if NOSM: return []
        ops = []
        o = ops.append
        vals = [ss(t) + r for r in range(16)]
        for x in vals[8:]:
            o(f"v_exp_f32 v{x}, v{x}")
        ops += cvt_ops(t)
        if PK:
            for i in range(0, 16, 2):
                o(f"v_pk_add_f32 {vr(vLp,2)}, {vr(vLp,2)}, {vr(vals[i],2)}")
        else:
            for i in range(0, 16, 2):
                o(f"v_add_f32 v{vLp}, v{vLp}, v{vals[i]}")
                o(f"v_add_f32 v{vLp+1}, v{vLp+1}, v{vals[i+1]}")
        return ops

    def group(mm, rd, ops, extra, nwait):
        k = 0
        for j in range(8):
            issued_now = min(2 * j, 8) * RD_PER[0] if rd else 0
            w = (7 - j) * nwait + issued_now
            mm(j)
            if rd and j < 4:
                rd(2 * j); rd(2 * j + 1)
            tgt = ((j + 1) * len(ops)) // 8
            while k < tgt:
                a(ops[k]); k += 1
            if j in extra:
                extra[j]()
    RD_PER = [1]

    NV = 9 if (PF_WO and not BURST) else 8
    a("s_waitcnt vmcnt(0) lgkmcnt(0)" if EARLYR else ("s_waitcnt vmcnt(8)" if BURST == 2 else "s_waitcnt vmcnt(12)"))
    a("s_barrier")
    k_addr()
    for ks in range(8):
        rdk(0, ks)
    a("s_waitcnt lgkmcnt(0)")
    for ks in range(8):
        mmk(0, ks)
    for ks in range(8):
        rdk(1, ks)
    a("s_nop 7")
    a("s_nop 3")
    for o in sm_a(0, True):
        a(o)
    a(f"s_mov_b32 s{sCnt}, 0")
    a.lab("L_at_loop")
    a(f"s_waitcnt vmcnt({NV}) lgkmcnt(0)")
    a("s_barrier")
    v_addr()
    if PF_WO and not BURST: pf_piece()
    pvv = dma_kv_pieces(False)
    pkk = dma_kv_pieces(True)
    RD_PER[0] = 2
    group(lambda j: mmk(1, j), lambda j: rdv(0, j), sm_b(0), {1: pkk[0], 3: pkk[1], 5: pkk[2], 7: pkk[3]}, 0)
    a(f"s_waitcnt vmcnt({NV})")
    a("s_barrier")
    k_addr()
    RD_PER[0] = 1
    a("s_waitcnt lgkmcnt(0)")
    group(lambda j: mmv(0, j), lambda j: rdk(0, j), ["s_nop 3"] + sm_a(1, False), {1: pvv[0], 3: pvv[1], 5: pvv[2], 7: pvv[3]}, 0)
    a(f"s_add_u32 s{sCnt}, s{sCnt}, 1")
    a(f"s_cmp_eq_u32 s{sCnt}, 8")
    a("s_cbranch_scc1 L_at_tail")
    RD_PER[0] = 2
    a("s_waitcnt lgkmcnt(0)")
    group(lambda j: mmk(0, j), lambda j: rdv(1, j), sm_b(1), {}, 0)
    RD_PER[0] = 1
    a("s_waitcnt lgkmcnt(0)")
    a("s_nop 1")
    group(lambda j: mmv(1, j), lambda j: rdk(1, j), ["s_nop 7"] + sm_a(0, False), {}, 0)
    a("s_branch L_at_loop")
    for r in rare:
        a.l.append(r)
    a.lab("L_at_tail")
    a("s_waitcnt lgkmcnt(0)")
    for j in range(8):
        rdv(1, j)
    for o in sm_b(1):
        a(o)
    a("s_waitcnt lgkmcnt(0)")
    a("s_nop 1")
    for j in range(8):
        mmv(1, j)
    stamp(a, 3)
    a("s_nop 7")
    a("s_nop 3")
    l = vLp
    a(f"v_add_f32 v{l}, v{l}, v{l+1}")
    a(f"v_mov_b32 v{vT+1}, v{l}")
    a("s_nop 1")
    a(f"v_permlane32_swap_b32 v{l}, v{vT+1}")
    a("s_nop 1")
    a(f"v_add_f32 v{l}, v{l}, v{vT+1}")
    a(f"v_rcp_f32 v{l}, v{l}")
    a("s_nop 0")
    a(f"s_mov_b32 s{sT1}, 7168")
    a(f"s_mov_b32 s{sT2}, 14336")
    a(f"s_mov_b32 s{sT3}, 21504")
    for T in range(4):
        for s_ in range(2):
            o = FR + (T * 2 + s_) * 4
            x = acc(T) + s_ * 8
            for r in range(8):
                a(f"v_mul_f32 v{x+r}, v{x+r}, v{l}")
            for j in range(4):
                a(f"v_cvt_pk_bf16_f32 v{o+j}, v{x+2*j}, v{x+2*j+1}")
            so = "0" if T == 0 else f"s{sT0+T}"
            a(f"buffer_store_dwordx4 {vr(o,4)}, v{vOst}, {sr(sO,4)}, {so} offen offset:{s_*512} {os.environ.get('OSF','')}")
    a.lab("L_attn_fin")
    if DIAG:
        a("s_waitcnt vmcnt(0)")
        stamp(a, 4)
        diag_dump(a, 52, sW, 128 << 20, 3)
    a.lab("L_attn_end")
    a("s_endpgm")

def gen_oproj(a):
    NST = OP_DEPTH
    assert 32 % NST == 0
    sW = 3
    sOo, sWO, sOUT = 20, 24, 28
    sKo, sKw = 32, 33
    sPo, sPw = 34, 35
    sCnt = 36
    sBig = 39
    sRing = 40
    vLane = 1
    vO0, vO1 = 2, 3
    vWd = 4
    vRd = 8
    g, c = 12, 13
    vT = 14
    ST = 32
    AF = ST + NST * 28
    def of(st, nt): return ST + st * 28 + nt * 4
    def acc(i, nt): return (nt * 4 + i) * 4
    RING = NST * 4096

    a.lab("oproj_kernel")
    a("s_cmp_ge_u32 s2, 256")
    a("s_cbranch_scc1 L_op_end")
    stamp(a, 0)
    if DIAG: a("s_memrealtime s[78:79]")
    a("s_and_b32 s4, s2, 7")
    a("s_lshr_b32 s5, s2, 3")
    a("s_lshr_b32 s6, s4, 2")
    a("s_bfe_u32 s7, s4, 0x10001")
    a("s_lshl_b32 s7, s7, 2")
    a("s_and_b32 s8, s5, 3")
    a("s_add_u32 s7, s7, s8")
    a("s_and_b32 s8, s4, 1")
    a("s_lshl_b32 s8, s8, 3")
    a("s_lshr_b32 s9, s5, 2")
    a("s_add_u32 s8, s8, s9")
    a("s_mul_i32 s9, s6, 40")
    a("s_add_u32 s10, s0, s9")
    a("s_addc_u32 s11, s1, 0")
    a("s_load_dwordx2 s[12:13], s[10:11], 32")
    a("s_load_dwordx2 s[14:15], s[0:1], 80")
    a("s_load_dwordx2 s[16:17], s[0:1], 96")
    a(f"v_and_b32 v{vLane}, 63, v0")
    a("v_lshrrev_b32 v8, 6, v0")
    a("s_nop 0")
    a(f"v_readfirstlane_b32 s{sW}, v8")
    a(f"s_mov_b32 s{sBig}, 0x7f000000")
    a(f"v_lshrrev_b32 v{g}, 4, v{vLane}")
    a(f"v_and_b32 v{c}, 15, v{vLane}")
    a(f"v_lshlrev_b32 v{vO0}, 4, v{vLane}")
    a(f"v_add_u32 v{vO1}, 4096, v{vO0}")
    a(f"s_mul_i32 s{sRing}, s{sW}, {RING}")
    t0, t1, t2 = 20, 21, 22
    a(f"v_lshrrev_b32 v{t0}, 3, v{vLane}")
    a(f"v_bfe_u32 v{t1}, v{vLane}, 4, 2")
    a(f"v_lshlrev_b32 v{t1}, 1, v{t1}")
    a(f"v_and_b32 v{t2}, 7, v{vLane}")
    a(f"v_xor_b32 v{t1}, v{t1}, v{t2}")
    a(f"v_lshlrev_b32 v{t1}, 4, v{t1}")
    a(f"v_lshl_add_u32 v{vWd}, v{t0}, 11, v{t1}")
    for i in range(1, 4):
        a(f"v_add_u32 v{vWd+i}, {i*(8*2048-1024)}, v{vWd}")
    rp, cp = 23, 24
    a(f"v_bfe_u32 v{rp}, v{vLane}, 2, 2")
    a(f"v_and_b32 v{cp}, 3, v{vLane}")
    a(f"v_and_b32 v{t0}, 1, v{g}")
    a(f"v_lshlrev_b32 v{t0}, 1, v{t0}")
    a(f"v_lshrrev_b32 v{t1}, 1, v{rp}")
    a(f"v_add_u32 v{t0}, v{t0}, v{t1}")
    a(f"v_lshlrev_b32 v{t0}, 1, v{t0}")
    a(f"v_lshrrev_b32 v{t1}, 1, v{cp}")
    a(f"v_xor_b32 v{t0}, v{t0}, v{t1}")
    a(f"v_lshlrev_b32 v{t0}, 4, v{t0}")
    a(f"v_and_b32 v{t1}, 1, v{cp}")
    a(f"v_lshl_or_b32 v{t0}, v{t1}, 3, v{t0}")
    a(f"v_and_b32 v{t1}, 1, v{g}")
    a(f"v_lshl_add_u32 v{t1}, v{t1}, 2, v{rp}")
    a(f"v_lshrrev_b32 v{t2}, 1, v{g}")
    a(f"v_lshl_add_u32 v{t1}, v{t2}, 4, v{t1}")
    a(f"v_lshl_add_u32 v{t0}, v{t1}, 7, v{t0}")
    a(f"v_add_u32 v{vRd}, s{sRing}, v{t0}")
    for i in range(1, 4):
        a(f"v_xor_b32 v{vRd+i}, {i<<5}, v{vRd}")
    a("s_waitcnt lgkmcnt(0)")
    a("s_lshl_b32 s9, s6, 3")
    a("s_add_u32 s9, s9, s7")
    a("s_mul_i32 s9, s9, 917504")
    a(f"s_add_u32 s{sOo}, s16, s9")
    a(f"s_addc_u32 s{sOo+1}, s17, 0")
    a(f"s_mov_b32 s{sOo+2}, 917504")
    a(f"s_mov_b32 s{sOo+3}, 0x00020000")
    a("s_lshl_b32 s9, s8, 7")
    a(f"s_add_u32 s{sWO}, s12, s9")
    a(f"s_addc_u32 s{sWO+1}, s13, 0")
    a(f"s_sub_u32 s{sWO+2}, 8388608, s9")
    a(f"s_mov_b32 s{sWO+3}, 0x00020000")
    a("s_mul_i32 s10, s7, 458752")
    a("s_lshl_b32 s11, s6, 11")
    a("s_add_u32 s10, s10, s11")
    a("s_add_u32 s10, s10, s9")
    a(f"s_add_u32 s{sOUT}, s14, s10")
    a(f"s_addc_u32 s{sOUT+1}, s15, 0")
    a(f"s_mov_b32 s{sOUT+2}, {111*4096+128}")
    a(f"s_mov_b32 s{sOUT+3}, 0x00020000")
    a(f"s_mul_i32 s{sKo}, s{sW}, {32*7168}")
    a(f"s_lshl_b32 s{sKw}, s{sW}, 21")

    def ld_wo(st, so):
        a(f"s_add_u32 m0, s{sRing}, {st*4096}")
        a("s_nop 0")
        for i in range(4):
            a(f"buffer_load_dwordx4 v{vWd+i}, {sr(sWO,4)}, s{so} offen offset:{i*1024} {os.environ.get('OPF','')} lds")
    def ld_o(st, so):
        for nt in range(7):
            v = vO0 if nt < 4 else vO1
            a(f"buffer_load_dwordx4 {vr(of(st,nt),4)}, v{v}, {sr(sOo,4)}, s{so} offen offset:{(nt&3)*1024} {os.environ.get('OLF','')}")
    def rd_af(st, buf):
        for i in range(4):
            for hh in range(2):
                a(f"ds_read_b64_tr_b16 {vr(AF+buf*16+i*4+hh*2,2)}, v{vRd+i} offset:{st*4096+hh*1024}")
    for st in range(NST):
        ld_wo(st, sKw)
        ld_o(st, sKo)
        a(f"s_add_u32 s{sKw}, s{sKw}, 65536")
        a(f"s_add_u32 s{sKo}, s{sKo}, 7168")
    for i in range(112):
        a(f"v_accvgpr_write_b32 a{i}, 0")
    stamp(a, 1)
    a(f"s_waitcnt vmcnt({(NST-1)*11+7})")
    rd_af(0, 0)
    a(f"s_mov_b32 s{sCnt}, 0")
    a.lab("L_op_loop")
    for st in range(NST):
        buf = st & 1
        nst = (st + 1) % NST
        a(f"s_cmp_lt_u32 s{sCnt}, {32//NST - 1}")
        a(f"s_cselect_b32 s{sPw}, s{sKw}, s{sBig}")
        a(f"s_cselect_b32 s{sPo}, s{sKo}, s{sBig}")
        a(f"s_waitcnt vmcnt({7+(NST-2)*11}) lgkmcnt(0)")
        ld_wo(st, sPw)
        rd_af(nst, buf ^ 1)
        for nt in range(7):
            for i in range(4):
                a(f"v_mfma_f32_16x16x32_bf16 {ar(acc(i,nt),4)}, {vr(AF+buf*16+i*4,4)}, {vr(of(st,nt),4)}, {ar(acc(i,nt),4)}")
        ld_o(st, sPo)
        a(f"s_add_u32 s{sKw}, s{sKw}, 65536")
        a(f"s_add_u32 s{sKo}, s{sKo}, 7168")
    a(f"s_add_u32 s{sCnt}, s{sCnt}, 1")
    a(f"s_cmp_lt_u32 s{sCnt}, {32//NST}")
    a("s_cbranch_scc1 L_op_loop")
    stamp(a, 2)
    a("s_waitcnt vmcnt(0) lgkmcnt(0)")
    a("s_barrier")
    a(f"v_add_u32 v{vT+3}, 57344, v{vO0}")
    for wv in range(4):
        a(f"s_cmp_lg_u32 s{sW}, {wv}")
        a(f"s_cbranch_scc1 L_epw{wv}")
        for i in range(4):
            if i == wv: continue
            slot = (wv - i - 1) & 3
            base = i * 21504 + slot * 7168
            vb, off = (vO0, base) if base + 6144 < 65536 else (vT + 3, base - 57344)
            if i == 3 or (i == 2):
                pass
            for nt in range(7):
                o_ = base + nt * 1024
                if o_ < 65536:
                    a(f"ds_write_b128 v{vO0}, {ar(acc(i,nt),4)} offset:{o_}")
                else:
                    a(f"ds_write_b128 v{vT+3}, {ar(acc(i,nt),4)} offset:{o_-57344}")
        for nt in range(7):
            for r in range(4):
                a(f"v_accvgpr_read_b32 v{32+nt*4+r}, a{acc(wv,nt)+r}")
        a.lab(f"L_epw{wv}")
    a("s_waitcnt lgkmcnt(0)")
    a("s_barrier")
    a(f"s_mul_i32 s4, s{sW}, 21504")
    a(f"v_add_u32 v{vT}, s4, v{vO0}")
    a(f"v_lshlrev_b32 v{vT+2}, 12, v{c}")
    a(f"v_lshl_add_u32 v{vT+2}, v{g}, 3, v{vT+2}")
    a(f"s_lshl_b32 s4, s{sW}, 5")
    a(f"v_add_u32 v{vT+2}, s4, v{vT+2}")
    R = 64
    for nt in range(7):
        for sl in range(3):
            a(f"ds_read_b128 {vr(R+(nt*3+sl)*4,4)}, v{vT} offset:{sl*7168+nt*1024}")
    for nt in range(7):
        a(f"s_waitcnt lgkmcnt({min(15, (6-nt)*3)})")
        for r in range(4):
            x = 32 + nt * 4 + r
            b0 = R + nt * 12 + r
            a(f"v_add_f32 v{b0}, v{b0}, v{b0+4}")
            a(f"v_add_f32 v{x}, v{x}, v{b0+8}")
            a(f"v_add_f32 v{x}, v{x}, v{b0}")
        x = 32 + nt * 4
        O = 160 + nt * 2
        a(f"v_cvt_pk_bf16_f32 v{O}, v{x}, v{x+1}")
        a(f"v_cvt_pk_bf16_f32 v{O+1}, v{x+2}, v{x+3}")
        a(f"s_mov_b32 s5, {nt*65536}")
        a(f"buffer_store_dwordx2 {vr(O,2)}, v{vT+2}, {sr(sOUT,4)}, s5 offen {os.environ.get('OUTF','')}")
    a.lab("L_op_fin")
    if DIAG:
        a("s_waitcnt vmcnt(0)")
        stamp(a, 3)
        diag_dump(a, 16, sW, 129 << 20)
    a.lab("L_op_end")
    a("s_endpgm")
    return AF + 32


HEADER = open("cdna_kernels/" + NAME + ".s.ref").read().split("; Override launch")[0]

def kd(name, vgpr, accum, sgpr=102):
    return f""".amdhsa_kernel {name}
  .amdhsa_next_free_vgpr {vgpr}
  .amdhsa_next_free_sgpr {sgpr}
  .amdhsa_accum_offset {accum}
  .amdhsa_group_segment_fixed_size 0
  .amdhsa_kernarg_size 104
  .amdhsa_user_sgpr_count 2
  .amdhsa_user_sgpr_kernarg_segment_ptr 1
  .amdhsa_system_sgpr_workgroup_id_x 1
.end_amdhsa_kernel
"""

def main():
    out = HEADER
    out += "; @launch kernel=attn_kernel grid=(256,1,1) block=(512,1,1) lds=163840\n"
    out += "; @launch kernel=oproj_kernel grid=(256,1,1) block=(256,1,1) lds=114688\n"
    out += '.amdgcn_target "amdgcn-amd-amdhsa--gfx950"\n.text\n'
    for name, fn in (("attn_kernel", gen_attn), ("oproj_kernel", gen_oproj)):
        a = A()
        fn(a)
        out += f".globl {name}\n.p2align 8\n.type {name},@function\n" + a.text()
    out += '.section .rodata,"a"\n.p2align 6\n'
    out += kd("attn_kernel", 256, 256)
    out += ".p2align 6\n"
    out += kd("oproj_kernel", 368, 256)
    path = sys.argv[1] if len(sys.argv) > 1 else "cdna_kernels/" + NAME + ".s"
    open(path, "w").write(out)

if __name__ == "__main__":
    main()
```

```python
import sys, os, struct
DIAG = int(os.environ.get("DIAG", "0"))
NAME = "concat_heads__mha_block_cached__mha_block_cached__near_ridge"
PF_WQ = int(os.environ.get("PF_WQ", "1"))
PF_WO = int(os.environ.get("PF_WO", "1"))
OP_DEPTH = int(os.environ.get("OP_DEPTH", "4"))
PRIO = int(os.environ.get("PRIO", "1"))

class A:
    def __init__(self):
        self.l = []
    def __call__(self, s):
        self.l.append("    " + s)
    def lab(self, s):
        self.l.append(s + ":")
    def text(self):
        return "\n".join(self.l) + "\n"

def vr(a, n):
    return f"v[{a}:{a+n-1}]" if n > 1 else f"v{a}"
def ar(a, n):
    return f"a[{a}:{a+n-1}]" if n > 1 else f"a{a}"
def sr(a, n):
    return f"s[{a}:{a+n-1}]" if n > 1 else f"s{a}"

SCALE_C = 0.08838834764831845 * 1.4426950408889634
def f32bits(x):
    return struct.unpack("<I", struct.pack("<f", x))[0]

def stamp(a, i):
    if DIAG:
        a("s_waitcnt lgkmcnt(0)")
        a(f"s_mem{'real' if DIAG == 2 else ''}time s[{60+2*i}:{61+2*i}]")
        a("s_waitcnt lgkmcnt(0)")
def diag_dump(a, wsreg, sW, region, lg=2):
    if not DIAG: return
    if DIAG == 2:
        u = region
        a(f"s_cmp_lg_u32 s{sW}, 0")
        a(f"s_cbranch_scc1 L_dd{u}")
        if lg == 3:
            a("s_and_b32 s84, s2, 63")
            a("s_lshr_b32 s85, s2, 6")
            a("s_cmp_lg_u32 s84, s85")
            a(f"s_cbranch_scc1 L_dd{u}")
            a(f"s_add_u32 s88, s{wsreg}, {200<<20}")
            a(f"s_addc_u32 s89, s{wsreg+1}, 0")
            a("s_mov_b32 s90, 256")
            a("s_mov_b32 s91, 0x00020000")
            a("s_lshl_b32 s84, s85, 4")
            a("v_mov_b32 v1, s84")
            for i in range(4):
                a(f"s_sub_u32 s85, s{62+2*i}, s{60+2*i}")
                a("v_mov_b32 v2, s85")
                a(f"buffer_store_dword v2, v1, s[88:91], 0 offen offset:{i*4}")
                a("s_waitcnt vmcnt(0)")
        else:
            a("s_cmp_lg_u32 s2, 0")
            a(f"s_cbranch_scc1 L_dd{u}")
            a(f"s_add_u32 s88, s{wsreg}, {200<<20}")
            a(f"s_addc_u32 s89, s{wsreg+1}, 0")
            a("s_mov_b32 s90, 64")
            a("s_mov_b32 s91, 0x00020000")
            a("s_load_dwordx2 s[84:85], s[0:1], 88")
            a("v_and_b32 v1, 63, v0")
            a("v_lshlrev_b32 v1, 2, v1")
            a("buffer_load_dword v2, v1, s[88:91], 0 offen")
            a("s_waitcnt vmcnt(0) lgkmcnt(0)")
            a("s_mov_b32 s86, 64")
            a("s_mov_b32 s87, 0x00020000")
            a("buffer_store_dword v2, v1, s[84:87], 0 offen")
            a("s_waitcnt vmcnt(0)")
        a.lab(f"L_dd{u}")
        return
    a("s_memrealtime s[80:81]")
    a("s_getreg_b32 s82, hwreg(HW_REG_HW_ID)")
    a("s_getreg_b32 s83, hwreg(HW_REG_XCC_ID)")
    a("s_waitcnt lgkmcnt(0)")
    a(f"s_lshl_b32 s84, s2, {lg}")
    a(f"s_add_u32 s84, s84, s{sW}")
    a(f"s_lshl_b32 s84, s84, 7")
    a(f"s_add_u32 s84, s84, {region}")
    a(f"s_add_u32 s88, s{wsreg}, s84")
    a(f"s_addc_u32 s89, s{wsreg+1}, 0")
    a("s_mov_b32 s90, 128")
    a("s_mov_b32 s91, 0x00020000")
    a("v_mov_b32 v1, 0")
    for i in range(24):
        a(f"v_mov_b32 v2, s{60+i}")
        a(f"buffer_store_dword v2, v1, s[88:91], 0 offen offset:{i*4}")
        a("s_waitcnt vmcnt(0)")

class VM:
    def __init__(self):
        self.ops = []
    def issue(self, tag, n):
        self.ops += [tag] * n
    def need(self, *tags):
        last = max(i for i, t in enumerate(self.ops) if t in tags)
        for t in tags:
            assert t in self.ops, t
        return len(self.ops) - 1 - last

KVF = os.environ.get("KVF", "")
WQF = os.environ.get("WQF", "")
KV_START = int(os.environ.get("KV_START", "20"))

def gen_attn(a):
    PK = int(os.environ.get("PK", "1"))
    STAG = int(os.environ.get("STAG", "0"))
    sW = 3
    sWq = 99
    sE = 96
    sX, sWQ, sK, sV, sO, sWO = 20, 24, 28, 32, 36, 56
    sSlotR, sSlotW = 40, 41
    sM0kv = 42
    sWQoff = 43
    sXoff = 44
    sKVoff = 45
    sCnt = 46
    sC = 47
    sT0, sT1, sT2, sT3 = 48, 49, 50, 51
    sM0q = 92
    sM0x = 93
    vLane = 1
    vWQd = 2
    vXd = 4
    vKd = 6
    vVd = 10
    vA0k, vA0v = 11, 12
    vOst = 13
    vAd = 14
    vAv = 22
    vM = 26
    vLp = 28
    vT = 30
    vPFd = 44
    vP = 48
    ACC = 64
    FR = 128
    QF = 192
    SS = 224
    QB = [128, 160]
    XB = [192, 208]
    WQ0, X0 = 65536, 131072
    MF = "v_mfma_f32_32x32x16_bf16"

    def acc(T): return ACC + T * 16
    def ss(t): return SS + t * 16
    def pf(t, s_): return vP + (t * 2 + s_) * 4

    a.lab("attn_kernel")
    a("s_cmp_ge_u32 s2, 256")
    a("s_cbranch_scc1 L_attn_end")
    stamp(a, 0)
    if DIAG: a("s_memrealtime s[78:79]")
    a("s_and_b32 s4, s2, 7")
    a("s_lshr_b32 s5, s2, 3")
    a("s_lshr_b32 s6, s4, 2")
    a("s_and_b32 s7, s4, 3")
    a("s_lshl_b32 s7, s7, 2")
    a("s_and_b32 s8, s5, 3")
    a("s_add_u32 s7, s7, s8")
    a("s_lshr_b32 s8, s5, 2")
    a("s_mul_i32 s9, s6, 40")
    a("s_add_u32 s10, s0, s9")
    a("s_addc_u32 s11, s1, 0")
    a("s_load_dwordx8 s[12:19], s[10:11], 0")
    a("s_load_dwordx2 s[94:95], s[10:11], 32")
    a("s_load_dwordx2 s[52:53], s[0:1], 96")
    a(f"v_and_b32 v{vLane}, 63, v0")
    a("v_lshrrev_b32 v2, 6, v0")
    a("s_nop 0")
    a(f"v_readfirstlane_b32 s{sW}, v2")
    a(f"s_mov_b32 s{sC}, 0x{f32bits(SCALE_C):08x}")
    a(f"s_mov_b32 s100, 0x{f32bits(SCALE_C):08x}")
    a(f"s_mov_b32 s101, 0x{f32bits(SCALE_C):08x}")
    g, c, rp, cp, hh_, m_ = 36, 37, 38, 39, 42, 43
    t0, t1 = 40, 41
    a(f"v_lshrrev_b32 v{g}, 4, v{vLane}")
    a(f"v_and_b32 v{c}, 15, v{vLane}")
    a(f"v_bfe_u32 v{rp}, v{vLane}, 2, 2")
    a(f"v_and_b32 v{cp}, 3, v{vLane}")
    a(f"v_lshrrev_b32 v{hh_}, 5, v{vLane}")
    a(f"v_and_b32 v{m_}, 31, v{vLane}")
    a(f"s_and_b32 s{sWq}, s{sW}, 3")
    a(f"s_lshr_b32 s{sE}, s{sW}, 2")
    a(f"s_lshl_b32 s{sM0kv}, s{sW}, 12")
    a(f"s_lshl_b32 s{sM0q}, s{sW}, 11")
    a(f"s_add_u32 s{sM0x}, s{sM0q}, {X0}")
    a(f"s_add_u32 s{sM0q}, s{sM0q}, {WQ0}")
    a(f"v_lshlrev_b32 v{t1}, 2, v{hh_}")
    a(f"v_xor_b32 v{t1}, v{t1}, v{c}")
    a(f"v_lshlrev_b32 v{t1}, 4, v{t1}")
    a(f"v_lshl_add_u32 v{t1}, v{hh_}, 13, v{t1}")
    a(f"v_and_b32 v{t0}, 1, v{g}")
    a(f"v_lshl_add_u32 v{t1}, v{t0}, 8, v{t1}")
    a(f"s_lshl_b32 s{sT0}, s{sW}, 15")
    a(f"v_add_u32 v{vWQd}, s{sT0}, v{t1}")
    a(f"v_xor_b32 v{t1}, 128, v{vWQd}")
    a(f"v_add_u32 v{vWQd+1}, {2*8192-1024}, v{t1}")
    a(f"v_and_b32 v{t1}, 7, v{vLane}")
    a(f"v_xor_b32 v{t0}, v{g}, v{t1}")
    a(f"v_lshlrev_b32 v{t0}, 4, v{t0}")
    a(f"v_lshrrev_b32 v{t1}, 3, v{vLane}")
    a(f"v_lshl_add_u32 v{t0}, v{t1}, 11, v{t0}")
    a(f"v_add_u32 v{vXd}, s{sT0}, v{t0}")
    a(f"v_xor_b32 v{t0}, 64, v{vXd}")
    a(f"v_add_u32 v{vXd+1}, {8*2048-1024}, v{t0}")
    a("s_waitcnt lgkmcnt(0)")
    a("s_mul_i32 s9, s8, 229376")
    a(f"s_add_u32 s{sX}, s12, s9")
    a(f"s_addc_u32 s{sX+1}, s13, 0")
    a(f"s_mov_b32 s{sX+2}, 229376")
    a(f"s_mov_b32 s{sX+3}, 0x00020000")
    a("s_lshl_b32 s9, s7, 9")
    a(f"s_add_u32 s{sWQ}, s18, s9")
    a(f"s_addc_u32 s{sWQ+1}, s19, 0")
    a(f"s_sub_u32 s{sWQ+2}, 8388608, s9")
    a(f"s_mov_b32 s{sWQ+3}, 0x00020000")
    a(f"s_mov_b32 s{sWQoff}, 0")
    a(f"s_mov_b32 s{sXoff}, 0")

    vm = VM()
    XF = os.environ.get("XF", "")
    def wq_pieces(cn):
        q = cn & 3
        def p0():
            a(f"s_add_u32 m0, s{sM0q}, {q*16384}")
            a("s_nop 0")
            a(f"buffer_load_dwordx4 v{vWQd}, {sr(sWQ,4)}, s{sWQoff} offen {WQF} lds")
            vm.issue(("wq", cn), 1)
        def p1():
            a(f"s_add_u32 m0, s{sM0q}, {q*16384}")
            a("s_nop 0")
            a(f"buffer_load_dwordx4 v{vWQd+1}, {sr(sWQ,4)}, s{sWQoff} offen offset:1024 {WQF} lds")
            if not os.environ.get("NOADV"): a(f"s_add_u32 s{sWQoff}, s{sWQoff}, {32*8192}")
            vm.issue(("wq", cn), 1)
        return [p0, p1]
    def x_pieces(m):
        q = m & 1
        def p0():
            a(f"s_add_u32 m0, s{sM0x}, {q*16384}")
            a("s_nop 0")
            a(f"buffer_load_dwordx4 v{vXd}, {sr(sX,4)}, s{sXoff} offen {XF} lds")
            vm.issue(("x", m), 1)
        def p1():
            a(f"s_add_u32 m0, s{sM0x}, {q*16384}")
            a("s_nop 0")
            a(f"buffer_load_dwordx4 v{vXd+1}, {sr(sX,4)}, s{sXoff} offen offset:1024 {XF} lds")
            if not os.environ.get("NOADV"): a(f"s_add_u32 s{sXoff}, s{sXoff}, 128")
            vm.issue(("x", m), 1)
        return [p0, p1]
    def kv_voff(isK, i):
        return vKd + i if isK else vVd
    def kv_pieces(n):
        isK = n % 2 == 0
        srd = sK if isK else sV
        out = []
        for i in range(4):
            def p(i=i):
                a(f"s_add_u32 m0, s{sM0kv}, {n*32768}")
                a(f"s_mov_b32 s{sT0}, {(n>>1)*16384}")
                a(f"buffer_load_dwordx4 v{kv_voff(isK,i)}, {sr(srd,4)}, s{sT0} offen offset:{i*1024} {KVF} lds")
                vm.issue(("kv", n), 1)
            out.append(p)
        return out

    for p in x_pieces(0) + wq_pieces(0) + wq_pieces(1) + x_pieces(1) + wq_pieces(2) + wq_pieces(3):
        p()

    a(f"v_bfe_u32 v{t0}, v{m_}, 1, 3")
    a(f"v_xor_b32 v{t0}, v{t0}, v{hh_}")
    a(f"v_lshlrev_b32 v{t0}, 4, v{t0}")
    a(f"v_lshl_add_u32 v{t0}, v{m_}, 7, v{t0}")
    a(f"s_lshl_b32 s{sT0}, s{sWq}, 12")
    a(f"s_add_u32 s{sT0}, s{sT0}, {X0}")
    a(f"v_add_u32 v{vAd+4}, s{sT0}, v{t0}")
    for k in range(1, 4):
        a(f"v_xor_b32 v{vAd+4+k}, {k<<5}, v{vAd+4}")
    a(f"v_and_b32 v{t0}, 1, v{g}")
    a(f"v_and_b32 v{t1}, 1, v{cp}")
    a(f"v_lshl_or_b32 v{t0}, v{t0}, 1, v{t1}")
    a(f"v_lshl_or_b32 v{t0}, v{rp}, 2, v{t0}")
    a(f"v_lshlrev_b32 v{t0}, 4, v{t0}")
    a(f"v_lshrrev_b32 v{t1}, 1, v{cp}")
    a(f"v_lshl_or_b32 v{t0}, v{t1}, 3, v{t0}")
    a(f"v_lshl_add_u32 v{t1}, v{hh_}, 3, v{rp}")
    a(f"v_lshl_add_u32 v{t0}, v{t1}, 9, v{t0}")
    a(f"s_lshl_b32 s{sT0}, s{sE}, 8")
    a(f"s_add_u32 s{sT0}, s{sT0}, {WQ0}")
    a(f"v_add_u32 v{vAd}, s{sT0}, v{t0}")
    for k in range(1, 4):
        a(f"v_xor_b32 v{vAd+k}, {k<<6}, v{vAd}")
    a(f"s_lshl_b32 s{sT0}, s{sWq}, 12")
    a(f"v_xor_b32 v{t0}, v{g}, v{c}")
    a(f"v_lshlrev_b32 v{t0}, 4, v{t0}")
    a(f"v_lshl_add_u32 v{t0}, v{g}, 8, v{t0}")
    a(f"v_add_u32 v{vKd}, s{sT0}, v{t0}")
    for i in range(1, 4):
        a(f"v_xor_b32 v{vKd+i}, {i<<6}, v{vKd}")
    a(f"v_lshlrev_b32 v{t0}, 2, v{g}")
    a(f"v_xor_b32 v{t0}, v{t0}, v{c}")
    a(f"v_lshlrev_b32 v{t0}, 4, v{t0}")
    a(f"v_lshl_add_u32 v{t0}, v{g}, 8, v{t0}")
    a(f"v_add_u32 v{vVd}, s{sT0}, v{t0}")
    a(f"s_lshl_b32 s{sT1}, s{sE}, 14")
    a(f"v_xor_b32 v{t0}, v{hh_}, v{c}")
    a(f"v_lshlrev_b32 v{t0}, 4, v{t0}")
    a(f"v_lshl_add_u32 v{t0}, v{m_}, 8, v{t0}")
    a(f"v_add_u32 v{vA0k}, s{sT1}, v{t0}")
    a(f"v_and_b32 v{t0}, 1, v{g}")
    a(f"v_lshrrev_b32 v{t1}, 1, v{cp}")
    a(f"v_lshl_or_b32 v{t0}, v{t0}, 1, v{t1}")
    a(f"v_lshl_or_b32 v{t0}, v{rp}, 2, v{t0}")
    a(f"v_lshlrev_b32 v{t0}, 4, v{t0}")
    a(f"v_and_b32 v{t1}, 1, v{cp}")
    a(f"v_lshl_or_b32 v{t0}, v{t1}, 3, v{t0}")
    a(f"v_lshl_add_u32 v{t1}, v{hh_}, 2, v{rp}")
    a(f"v_lshl_add_u32 v{t0}, v{t1}, 8, v{t0}")
    a(f"v_add_u32 v{vA0v}, s{sT1}, v{t0}")
    a(f"v_and_b32 v{t0}, 1, v{g}")
    a(f"v_lshlrev_b32 v{t0}, 10, v{t0}")
    a(f"v_lshl_add_u32 v{t0}, v{hh_}, 8, v{t0}")
    a(f"v_lshl_add_u32 v{t0}, v{c}, 4, v{t0}")
    a(f"s_lshl_b32 s{sT0}, s{sWq}, 11")
    a(f"v_add_u32 v{t0}, s{sT0}, v{t0}")
    a(f"v_mov_b32 v{t1}, 0x40000000")
    a(f"v_cmp_gt_u32 vcc, 7168, v{t0}")
    a("s_nop 1")
    a(f"v_cndmask_b32 v{vOst}, v{t1}, v{t0}, vcc")
    a(f"v_lshlrev_b32 v27, 4, v{vLane}")
    a("s_lshl_b32 s7, s7, 1")
    a(f"s_add_u32 s7, s7, s{sE}")
    a("s_lshl_b32 s9, s8, 5")
    a("s_add_u32 s9, s9, s7")
    a("s_lshl_b32 s10, s9, 15")
    a("s_lshl_b32 s9, s9, 17")
    a(f"s_add_u32 s{sK}, s14, s9")
    a(f"s_addc_u32 s{sK+1}, s15, 0")
    a(f"s_mov_b32 s{sK+2}, 131072")
    a(f"s_mov_b32 s{sK+3}, 0x00020000")
    a(f"s_add_u32 s{sV}, s16, s9")
    a(f"s_addc_u32 s{sV+1}, s17, 0")
    a(f"s_mov_b32 s{sV+2}, 131072")
    a(f"s_mov_b32 s{sV+3}, 0x00020000")
    a(f"s_add_u32 s{sWO}, s94, s10")
    a(f"s_addc_u32 s{sWO+1}, s95, 0")
    a(f"s_mov_b32 s{sWO+2}, 32768")
    a(f"s_mov_b32 s{sWO+3}, 0x00020000")
    a("s_lshl_b32 s9, s6, 3")
    a("s_add_u32 s9, s9, s8")
    a("s_lshl_b32 s9, s9, 7")
    a("s_lshl_b32 s10, s7, 2")
    a("s_add_u32 s9, s9, s10")
    a("s_mul_i32 s9, s9, 7168")
    a(f"s_add_u32 s{sO}, s52, s9")
    a(f"s_addc_u32 s{sO+1}, s53, 0")
    a(f"s_mov_b32 s{sO+2}, 28672")
    a(f"s_mov_b32 s{sO+3}, 0x00020000")
    a(f"s_mov_b32 s{sSlotR}, 0")
    a(f"s_mov_b32 s{sSlotW}, 131072")
    a(f"s_mov_b32 s{sKVoff}, 32768")
    for i in range(64):
        a(f"v_mov_b32 v{ACC+i}, 0")

    def q_rd_x(m):
        xb = m & 1
        for k in range(4):
            a(f"ds_read_b128 {vr(XB[xb]+k*4,4)}, v{vAd+4+k} offset:{(m&1)*16384}")
    def q_rd(buf, f, q):
        ks, mt = f >> 2, f & 3
        for hh in range(2):
            a(f"ds_read_b64_tr_b16 {vr(QB[buf]+f*4+hh*2,2)}, v{vAd+mt} offset:{q*16384+ks*8192+hh*2048}")
    def q_mm(buf, f, xb, par):
        ks, mt = f >> 2, f & 3
        a(f"{MF} {vr(acc(mt),16)}, {vr(QB[buf]+f*4,4)}, {vr(XB[xb]+(par*2+ks)*4,4)}, {vr(acc(mt),16)}")

    stamp(a, 1)
    a(f"s_waitcnt vmcnt({vm.need(('x',0),('wq',0))})")
    a("s_barrier")
    q_rd_x(0)
    for f in range(8):
        q_rd(0, f, 0)

    kvq = kv_pieces(0) + kv_pieces(1)
    kv_sched = {}
    nit = 29 - KV_START
    for idx, p in enumerate(kvq):
        it = KV_START + (idx * nit) // len(kvq)
        kv_sched.setdefault(it, []).append(p)
    sPF = 98
    a(f"s_lshl_b32 s{sPF}, s{sWq}, 13")
    def pf_piece():
        a(f"buffer_load_dword v26, v27, {sr(sWO,4)}, s{sPF} offen")
        a(f"s_add_u32 s{sPF}, s{sPF}, 1024")
        vm.issue("pf", 1)
    PFD = 24 if False else 26
    EARLYR = int(os.environ.get("EARLYR", "0"))
    BURST = int(os.environ.get("BURST", "0"))
    if EARLYR:
        EREG = {2: SS, 3: SS + 16}
        def kvr_pieces(n):
            isK = n % 2 == 0
            srd = sK if isK else sV
            out = []
            for i in range(4):
                def p(i=i):
                    a(f"s_mov_b32 s{sT0}, {(n>>1)*16384}")
                    a(f"buffer_load_dwordx4 {vr(EREG[n]+i*4,4)}, v{kv_voff(isK,i)}, {sr(srd,4)}, s{sT0} offen offset:{i*1024} {KVF}")
                    vm.issue(("kvr", n), 1)
                out.append(p)
            return out
        def wr_pieces(n):
            def p():
                a(f"s_waitcnt vmcnt({vm.need(('kvr', n))})")
                a(f"s_add_u32 s{sT0}, s{sM0kv}, {n*32768}")
                a(f"v_add_u32 v{vT}, s{sT0}, v27")
                for i in range(4):
                    a(f"ds_write_b128 v{vT}, {vr(EREG[n]+i*4,4)} offset:{i*1024}")
            return [p]
        kv_sched = {}
        kvq = kv_pieces(0) + kv_pieces(1) + kvr_pieces(2) + kvr_pieces(3)
        nit = 28 - KV_START
        for idx, p in enumerate(kvq):
            it = KV_START + (idx * nit) // len(kvq)
            kv_sched.setdefault(it, []).append(p)
        kv_sched.setdefault(29, []).extend(wr_pieces(2))
        kv_sched.setdefault(31, []).extend(wr_pieces(3))
    elif BURST:
        kv_sched = {}
        if BURST == 1:
            for idx, p in enumerate(kvq):
                it = KV_START + (idx * nit) // len(kvq)
                kv_sched.setdefault(it, []).append(p)
        kv_sched.setdefault(29, []).extend(kv_pieces(2))
        kv_sched.setdefault(31, []).extend(kv_pieces(3))
    else:
        if PF_WO: kv_sched.setdefault(29, []).append(pf_piece)
        kv_sched.setdefault(29, []).extend(kv_pieces(2))
        kv_sched.setdefault(31, []).extend(kv_pieces(3))
    sPhase, sRelax = 90, 91
    NB = 8 if BURST == 1 else 16
    if BURST:
        a("s_lshr_b32 s9, s2, 3")
        a("s_mul_i32 s10, s9, 52")
        a("s_lshr_b32 s10, s10, 8")
        a("s_mul_i32 s10, s10, 5")
        a(f"s_sub_u32 s{sPhase}, s9, s10")
        a(f"s_mov_b32 s{sRelax}, 0")

    def q_iter(cn):
        buf = cn & 1
        m = cn >> 1
        xb = m & 1
        has_next = cn < 31
        needs = []
        if has_next: needs.append(("wq", cn + 1))
        if cn % 2 == 1 and m + 1 <= 15: needs.append(("x", m + 1))
        w = vm.need(*needs) if needs else None
        if BURST and cn < KV_START:
            lid = f"{cn&3}"
            a(f"s_cmp_lg_u32 s{sRelax}, 0")
            a(f"s_cbranch_scc1 L_rlx{lid}")
            a(f"s_waitcnt vmcnt({w}) lgkmcnt(0)")
            a(f"s_branch L_go{lid}")
            a.lab(f"L_rlx{lid}")
            a(f"s_waitcnt vmcnt({w+NB}) lgkmcnt(0)")
            a(f"s_sub_u32 s{sRelax}, s{sRelax}, 1")
            a.lab(f"L_go{lid}")
        elif w is not None:
            a(f"s_waitcnt vmcnt({w}) lgkmcnt(0)")
        else:
            a("s_waitcnt lgkmcnt(0)")
        a("s_barrier")
        if BURST and cn < KV_START and (cn & 3) == 0:
            a(f"s_cmp_lg_u32 s{sCnt}, s{sPhase}")
            a("s_cbranch_scc1 L_noburst")
            sv = list(vm.ops)
            if BURST == 2:
                for p in kv_pieces(0) + kv_pieces(1): p()
            for i in range(8): pf_piece()
            vm.ops = sv
            a(f"s_mov_b32 s{sRelax}, 2")
            a.lab("L_noburst")
        pieces = []
        if cn % 2 == 0 and m + 2 <= 15: pieces += x_pieces(m + 2)
        if cn + 4 <= 31: pieces += wq_pieces(cn + 4)
        pieces += kv_sched.get(cn, [])
        slots = {}
        for i, p in enumerate(pieces):
            slots.setdefault((i * 8) // max(len(pieces), 1), []).append(p)
        rds = []
        if has_next:
            rds += [(lambda f=f: q_rd(buf ^ 1, f, (cn + 1) & 3)) for f in range(8)]
        if cn % 2 == 1 and m + 1 <= 15:
            rds.append(lambda: q_rd_x(m + 1))
        RPM = int(os.environ.get("RPM", "2"))
        for f in range(8):
            q_mm(buf, f, xb, cn & 1)
            for r_ in rds[f*RPM:(f+1)*RPM]:
                r_()
            for p in slots.get(f, []):
                p()
        return w

    ngrp = KV_START // 4
    a(f"s_mov_b32 s{sCnt}, 0")
    a.lab("L_qp_loop")
    ws0 = [q_iter(cn) for cn in range(4)]
    a(f"s_add_u32 s{sCnt}, s{sCnt}, 1")
    a(f"s_cmp_lt_u32 s{sCnt}, {ngrp}")
    a("s_cbranch_scc1 L_qp_loop")
    save = a.l
    for gI in range(1, ngrp):
        a.l = []
        wsg = [q_iter(gI * 4 + k) for k in range(4)]
        assert wsg == ws0, (wsg, ws0)
    a.l = save
    for cn in range(KV_START, 32):
        q_iter(cn)

    stamp(a, 2)
    a("s_nop 7")
    a("s_nop 3")
    NEGM = 32
    for mt in range(4):
        for s_ in range(2):
            q = QF + (mt * 2 + s_) * 4
            x = acc(mt) + s_ * 8
            for j in range(8):
                a(f"v_mul_f32 v{x+j}, s{sC}, v{x+j}")
            for j in range(4):
                a(f"v_cvt_pk_bf16_f32 v{q+j}, v{x+2*j}, v{x+2*j+1}")
    for i in range(64):
        a(f"v_mov_b32 v{ACC+i}, 0")
    for i in range(16):
        a(f"v_mov_b32 v{NEGM+i}, 0")
    a(f"v_mov_b32 v{vLp}, 0")
    a(f"v_mov_b32 v{vLp+1}, 0")
    sFirst = 97
    a(f"s_mov_b32 s{sFirst}, 1")

    def adv_slot(s):
        a(f"s_add_u32 s{s}, s{s}, 32768")
        a(f"s_cmp_ge_u32 s{s}, 163840")
        a(f"s_cselect_b32 s{s}, 0, s{s}")
    def dma_kv_pieces(isK):
        srd = sK if isK else sV
        out = []
        for i in range(4):
            def p(i=i):
                a(f"s_add_u32 m0, s{sSlotW}, s{sM0kv}")
                a("s_nop 0")
                if not os.environ.get("X_NODMA"): a(f"buffer_load_dwordx4 v{kv_voff(isK,i)}, {sr(srd,4)}, s{sKVoff} offen offset:{i*1024} {KVF} lds")
                if i == 3:
                    if not isK and not os.environ.get("NOADVKV"):
                        a(f"s_add_u32 s{sKVoff}, s{sKVoff}, 16384")
                    adv_slot(sSlotW)
            out.append(p)
        return out
    def k_addr():
        a(f"v_add_u32 v{vAd}, s{sSlotR}, v{vA0k}")
        for ks in range(1, 8):
            a(f"v_xor_b32 v{vAd+ks}, {ks<<5}, v{vAd}")
        adv_slot(sSlotR)
    def v_addr():
        a(f"v_add_u32 v{vAv}, s{sSlotR}, v{vA0v}")
        for T in range(1, 4):
            a(f"v_xor_b32 v{vAv+T}, {T<<6}, v{vAv}")
        adv_slot(sSlotR)
    XR_, YR_ = FR, FR + 32
    def rdk(t, ks):
        if not os.environ.get("X_NOLDS"): a(f"ds_read_b128 {vr(XR_+ks*4,4)}, v{vAd+ks} offset:{t*8192}")
    def rdv(t, j):
        s_, T = j >> 2, j & 3
        for hh in range(2):
            if not os.environ.get("X_NOLDS"): a(f"ds_read_b64_tr_b16 {vr(YR_+j*4+hh*2,2)}, v{vAv+T} offset:{(t*32+s_*16+hh*8)*256}")
    def mmk(t, ks):
        cin = vr(NEGM,16) if ks == 0 else vr(ss(t),16)
        a(f"{MF} {vr(ss(t),16)}, {vr(XR_+ks*4,4)}, {vr(QF+ks*4,4)}, {cin}")
    def mmv(t, j):
        s_, T = j >> 2, j & 3
        a(f"{MF} {vr(acc(T),16)}, {vr(YR_+j*4,4)}, {vr(pf(t,s_),4)}, {vr(acc(T),16)}")
    def cvt_ops(t):
        ops = []
        for s_ in range(2):
            p = pf(t, s_)
            x = ss(t) + s_ * 8
            for j in range(4):
                ops.append(f"v_cvt_pk_bf16_f32 v{p+j}, v{x+2*j}, v{x+2*j+1}")
        return ops
    NOSM = os.environ.get("X_NOSM")
    uid = [0]
    rare = []
    def sm_a(t, first_chk):
        if NOSM: return []
        uid[0] += 1
        u = uid[0]
        ops = []
        o = ops.append
        vals = [ss(t) + r for r in range(16)]
        mx, t1_ = vT, vT + 1
        o(f"v_max3_f32 v{mx}, v{vals[0]}, v{vals[1]}, v{vals[2]}")
        o(f"v_max3_f32 v{t1_}, v{vals[3]}, v{vals[4]}, v{vals[5]}")
        o(f"v_max3_f32 v{mx}, v{mx}, v{vals[6]}, v{vals[7]}")
        o(f"v_max3_f32 v{t1_}, v{t1_}, v{vals[8]}, v{vals[9]}")
        o(f"v_max3_f32 v{mx}, v{mx}, v{vals[10]}, v{vals[11]}")
        o(f"v_max3_f32 v{t1_}, v{t1_}, v{vals[12]}, v{vals[13]}")
        o(f"v_max3_f32 v{mx}, v{mx}, v{vals[14]}, v{vals[15]}")
        o(f"v_max_f32 v{mx}, v{mx}, v{t1_}")
        if first_chk:
            o(f"s_branch L_rare{u}\nL_back{u}:")
        else:
            o(f"v_cmp_lt_f32 vcc, 0x41000000, v{mx}\n    s_cbranch_vccnz L_rare{u}\nL_back{u}:")
        r = [f"L_rare{u}:"]
        R = lambda x: r.append("    " + x)
        R("s_nop 15")
        R(f"v_mov_b32 v{t1_}, v{mx}")
        R("s_nop 1")
        R(f"v_permlane32_swap_b32 v{mx}, v{t1_}")
        R("s_nop 1")
        R(f"v_max_f32 v{mx}, v{mx}, v{t1_}")
        if not first_chk:
            R(f"v_max_f32 v{mx}, 0, v{mx}")
            R(f"v_sub_f32 v{t1_}, 0, v{mx}")
            R(f"v_exp_f32 v{t1_}, v{t1_}")
        for i in range(16):
            R(f"v_sub_f32 v{NEGM+i}, v{NEGM+i}, v{mx}")
        for i in range(16):
            R(f"v_sub_f32 v{vals[i]}, v{vals[i]}, v{mx}")
        if not first_chk:
            R(f"v_mul_f32 v{vLp}, v{vLp}, v{t1_}")
            R(f"v_mul_f32 v{vLp+1}, v{vLp+1}, v{t1_}")
            for i in range(64):
                R(f"v_mul_f32 v{ACC+i}, v{ACC+i}, v{t1_}")
            for i in range(16):
                R(f"v_mul_f32 v{ss(1-t)+i}, v{ss(1-t)+i}, v{t1_}")
            for x in cvt_ops(1 - t):
                R(x)
        R("s_nop 1")
        R(f"s_branch L_back{u}")
        rare.append("\n".join(r))
        for x in vals[:8]:
            o(f"v_exp_f32 v{x}, v{x}")
        return ops
    def sm_b(t):
        if NOSM: return []
        ops = []
        o = ops.append
        vals = [ss(t) + r for r in range(16)]
        for x in vals[8:]:
            o(f"v_exp_f32 v{x}, v{x}")
        ops += cvt_ops(t)
        if PK:
            for i in range(0, 16, 2):
                o(f"v_pk_add_f32 {vr(vLp,2)}, {vr(vLp,2)}, {vr(vals[i],2)}")
        else:
            for i in range(0, 16, 2):
                o(f"v_add_f32 v{vLp}, v{vLp}, v{vals[i]}")
                o(f"v_add_f32 v{vLp+1}, v{vLp+1}, v{vals[i+1]}")
        return ops

    def group(mm, rd, ops, extra, nwait):
        k = 0
        for j in range(8):
            issued_now = min(2 * j, 8) * RD_PER[0] if rd else 0
            w = (7 - j) * nwait + issued_now
            mm(j)
            if rd and j < 4:
                rd(2 * j); rd(2 * j + 1)
            tgt = ((j + 1) * len(ops)) // 8
            while k < tgt:
                a(ops[k]); k += 1
            if j in extra:
                extra[j]()
    RD_PER = [1]

    NV = 9 if (PF_WO and not BURST) else 8
    a("s_waitcnt vmcnt(0) lgkmcnt(0)" if EARLYR else ("s_waitcnt vmcnt(8)" if BURST == 2 else "s_waitcnt vmcnt(12)"))
    a("s_barrier")
    k_addr()
    for ks in range(8):
        rdk(0, ks)
    a("s_waitcnt lgkmcnt(0)")
    for ks in range(8):
        mmk(0, ks)
    for ks in range(8):
        rdk(1, ks)
    a("s_nop 7")
    a("s_nop 3")
    for o in sm_a(0, True):
        a(o)
    a(f"s_mov_b32 s{sCnt}, 0")
    a.lab("L_at_loop")
    a(f"s_waitcnt vmcnt({NV}) lgkmcnt(0)")
    a("s_barrier")
    v_addr()
    if PF_WO and not BURST: pf_piece()
    pvv = dma_kv_pieces(False)
    pkk = dma_kv_pieces(True)
    RD_PER[0] = 2
    group(lambda j: mmk(1, j), lambda j: rdv(0, j), sm_b(0), {1: pkk[0], 3: pkk[1], 5: pkk[2], 7: pkk[3]}, 0)
    a(f"s_waitcnt vmcnt({NV})")
    a("s_barrier")
    k_addr()
    RD_PER[0] = 1
    a("s_waitcnt lgkmcnt(0)")
    group(lambda j: mmv(0, j), lambda j: rdk(0, j), ["s_nop 3"] + sm_a(1, False), {1: pvv[0], 3: pvv[1], 5: pvv[2], 7: pvv[3]}, 0)
    a(f"s_add_u32 s{sCnt}, s{sCnt}, 1")
    a(f"s_cmp_eq_u32 s{sCnt}, 8")
    a("s_cbranch_scc1 L_at_tail")
    RD_PER[0] = 2
    a("s_waitcnt lgkmcnt(0)")
    group(lambda j: mmk(0, j), lambda j: rdv(1, j), sm_b(1), {}, 0)
    RD_PER[0] = 1
    a("s_waitcnt lgkmcnt(0)")
    a("s_nop 1")
    group(lambda j: mmv(1, j), lambda j: rdk(1, j), ["s_nop 7"] + sm_a(0, False), {}, 0)
    a("s_branch L_at_loop")
    for r in rare:
        a.l.append(r)
    a.lab("L_at_tail")
    a("s_waitcnt lgkmcnt(0)")
    for j in range(8):
        rdv(1, j)
    for o in sm_b(1):
        a(o)
    a("s_waitcnt lgkmcnt(0)")
    a("s_nop 1")
    for j in range(8):
        mmv(1, j)
    stamp(a, 3)
    a("s_nop 7")
    a("s_nop 3")
    l = vLp
    a(f"v_add_f32 v{l}, v{l}, v{l+1}")
    a(f"v_mov_b32 v{vT+1}, v{l}")
    a("s_nop 1")
    a(f"v_permlane32_swap_b32 v{l}, v{vT+1}")
    a("s_nop 1")
    a(f"v_add_f32 v{l}, v{l}, v{vT+1}")
    a(f"v_rcp_f32 v{l}, v{l}")
    a("s_nop 0")
    a(f"s_mov_b32 s{sT1}, 7168")
    a(f"s_mov_b32 s{sT2}, 14336")
    a(f"s_mov_b32 s{sT3}, 21504")
    for T in range(4):
        for s_ in range(2):
            o = FR + (T * 2 + s_) * 4
            x = acc(T) + s_ * 8
            for r in range(8):
                a(f"v_mul_f32 v{x+r}, v{x+r}, v{l}")
            for j in range(4):
                a(f"v_cvt_pk_bf16_f32 v{o+j}, v{x+2*j}, v{x+2*j+1}")
            so = "0" if T == 0 else f"s{sT0+T}"
            a(f"buffer_store_dwordx4 {vr(o,4)}, v{vOst}, {sr(sO,4)}, {so} offen offset:{s_*512} {os.environ.get('OSF','')}")
    a.lab("L_attn_fin")
    if DIAG:
        a("s_waitcnt vmcnt(0)")
        stamp(a, 4)
        diag_dump(a, 52, sW, 128 << 20, 3)
    a.lab("L_attn_end")
    a("s_endpgm")

def gen_oproj(a):
    NST = OP_DEPTH
    assert 32 % NST == 0
    sW = 3
    sOo, sWO, sOUT = 20, 24, 28
    sKo, sKw = 32, 33
    sPo, sPw = 34, 35
    sCnt = 36
    sBig = 39
    sRing = 40
    vLane = 1
    vO0, vO1 = 2, 3
    vWd = 4
    vRd = 8
    g, c = 12, 13
    vT = 14
    ST = 32
    AF = ST + NST * 28
    def of(st, nt): return ST + st * 28 + nt * 4
    def acc(i, nt): return (nt * 4 + i) * 4
    RING = NST * 4096

    a.lab("oproj_kernel")
    a("s_cmp_ge_u32 s2, 256")
    a("s_cbranch_scc1 L_op_end")
    stamp(a, 0)
    if DIAG: a("s_memrealtime s[78:79]")
    a("s_and_b32 s4, s2, 7")
    a("s_lshr_b32 s5, s2, 3")
    a("s_lshr_b32 s6, s4, 2")
    a("s_bfe_u32 s7, s4, 0x10001")
    a("s_lshl_b32 s7, s7, 2")
    a("s_and_b32 s8, s5, 3")
    a("s_add_u32 s7, s7, s8")
    a("s_and_b32 s8, s4, 1")
    a("s_lshl_b32 s8, s8, 3")
    a("s_lshr_b32 s9, s5, 2")
    a("s_add_u32 s8, s8, s9")
    a("s_mul_i32 s9, s6, 40")
    a("s_add_u32 s10, s0, s9")
    a("s_addc_u32 s11, s1, 0")
    a("s_load_dwordx2 s[12:13], s[10:11], 32")
    a("s_load_dwordx2 s[14:15], s[0:1], 80")
    a("s_load_dwordx2 s[16:17], s[0:1], 96")
    a(f"v_and_b32 v{vLane}, 63, v0")
    a("v_lshrrev_b32 v8, 6, v0")
    a("s_nop 0")
    a(f"v_readfirstlane_b32 s{sW}, v8")
    a(f"s_mov_b32 s{sBig}, 0x7f000000")
    a(f"v_lshrrev_b32 v{g}, 4, v{vLane}")
    a(f"v_and_b32 v{c}, 15, v{vLane}")
    a(f"v_lshlrev_b32 v{vO0}, 4, v{vLane}")
    a(f"v_add_u32 v{vO1}, 4096, v{vO0}")
    a(f"s_mul_i32 s{sRing}, s{sW}, {RING}")
    t0, t1, t2 = 20, 21, 22
    a(f"v_lshrrev_b32 v{t0}, 3, v{vLane}")
    a(f"v_bfe_u32 v{t1}, v{vLane}, 4, 2")
    a(f"v_lshlrev_b32 v{t1}, 1, v{t1}")
    a(f"v_and_b32 v{t2}, 7, v{vLane}")
    a(f"v_xor_b32 v{t1}, v{t1}, v{t2}")
    a(f"v_lshlrev_b32 v{t1}, 4, v{t1}")
    a(f"v_lshl_add_u32 v{vWd}, v{t0}, 11, v{t1}")
    for i in range(1, 4):
        a(f"v_add_u32 v{vWd+i}, {i*(8*2048-1024)}, v{vWd}")
    rp, cp = 23, 24
    a(f"v_bfe_u32 v{rp}, v{vLane}, 2, 2")
    a(f"v_and_b32 v{cp}, 3, v{vLane}")
    a(f"v_and_b32 v{t0}, 1, v{g}")
    a(f"v_lshlrev_b32 v{t0}, 1, v{t0}")
    a(f"v_lshrrev_b32 v{t1}, 1, v{rp}")
    a(f"v_add_u32 v{t0}, v{t0}, v{t1}")
    a(f"v_lshlrev_b32 v{t0}, 1, v{t0}")
    a(f"v_lshrrev_b32 v{t1}, 1, v{cp}")
    a(f"v_xor_b32 v{t0}, v{t0}, v{t1}")
    a(f"v_lshlrev_b32 v{t0}, 4, v{t0}")
    a(f"v_and_b32 v{t1}, 1, v{cp}")
    a(f"v_lshl_or_b32 v{t0}, v{t1}, 3, v{t0}")
    a(f"v_and_b32 v{t1}, 1, v{g}")
    a(f"v_lshl_add_u32 v{t1}, v{t1}, 2, v{rp}")
    a(f"v_lshrrev_b32 v{t2}, 1, v{g}")
    a(f"v_lshl_add_u32 v{t1}, v{t2}, 4, v{t1}")
    a(f"v_lshl_add_u32 v{t0}, v{t1}, 7, v{t0}")
    a(f"v_add_u32 v{vRd}, s{sRing}, v{t0}")
    for i in range(1, 4):
        a(f"v_xor_b32 v{vRd+i}, {i<<5}, v{vRd}")
    a("s_waitcnt lgkmcnt(0)")
    a("s_lshl_b32 s9, s6, 3")
    a("s_add_u32 s9, s9, s7")
    a("s_mul_i32 s9, s9, 917504")
    a(f"s_add_u32 s{sOo}, s16, s9")
    a(f"s_addc_u32 s{sOo+1}, s17, 0")
    a(f"s_mov_b32 s{sOo+2}, 917504")
    a(f"s_mov_b32 s{sOo+3}, 0x00020000")
    a("s_lshl_b32 s9, s8, 7")
    a(f"s_add_u32 s{sWO}, s12, s9")
    a(f"s_addc_u32 s{sWO+1}, s13, 0")
    a(f"s_sub_u32 s{sWO+2}, 8388608, s9")
    a(f"s_mov_b32 s{sWO+3}, 0x00020000")
    a("s_mul_i32 s10, s7, 458752")
    a("s_lshl_b32 s11, s6, 11")
    a("s_add_u32 s10, s10, s11")
    a("s_add_u32 s10, s10, s9")
    a(f"s_add_u32 s{sOUT}, s14, s10")
    a(f"s_addc_u32 s{sOUT+1}, s15, 0")
    a(f"s_mov_b32 s{sOUT+2}, {111*4096+128}")
    a(f"s_mov_b32 s{sOUT+3}, 0x00020000")
    a(f"s_mul_i32 s{sKo}, s{sW}, {32*7168}")
    a(f"s_lshl_b32 s{sKw}, s{sW}, 21")

    def ld_wo(st, so):
        a(f"s_add_u32 m0, s{sRing}, {st*4096}")
        a("s_nop 0")
        for i in range(4):
            a(f"buffer_load_dwordx4 v{vWd+i}, {sr(sWO,4)}, s{so} offen offset:{i*1024} {os.environ.get('OPF','')} lds")
    def ld_o(st, so):
        for nt in range(7):
            v = vO0 if nt < 4 else vO1
            a(f"buffer_load_dwordx4 {vr(of(st,nt),4)}, v{v}, {sr(sOo,4)}, s{so} offen offset:{(nt&3)*1024} {os.environ.get('OLF','')}")
    def rd_af(st, buf):
        for i in range(4):
            for hh in range(2):
                a(f"ds_read_b64_tr_b16 {vr(AF+buf*16+i*4+hh*2,2)}, v{vRd+i} offset:{st*4096+hh*1024}")
    for st in range(NST):
        ld_wo(st, sKw)
        ld_o(st, sKo)
        a(f"s_add_u32 s{sKw}, s{sKw}, 65536")
        a(f"s_add_u32 s{sKo}, s{sKo}, 7168")
    for i in range(112):
        a(f"v_accvgpr_write_b32 a{i}, 0")
    stamp(a, 1)
    a(f"s_waitcnt vmcnt({(NST-1)*11+7})")
    rd_af(0, 0)
    a(f"s_mov_b32 s{sCnt}, 0")
    a.lab("L_op_loop")
    for st in range(NST):
        buf = st & 1
        nst = (st + 1) % NST
        a(f"s_cmp_lt_u32 s{sCnt}, {32//NST - 1}")
        a(f"s_cselect_b32 s{sPw}, s{sKw}, s{sBig}")
        a(f"s_cselect_b32 s{sPo}, s{sKo}, s{sBig}")
        a(f"s_waitcnt vmcnt({7+(NST-2)*11}) lgkmcnt(0)")
        ld_wo(st, sPw)
        rd_af(nst, buf ^ 1)
        for nt in range(7):
            for i in range(4):
                a(f"v_mfma_f32_16x16x32_bf16 {ar(acc(i,nt),4)}, {vr(AF+buf*16+i*4,4)}, {vr(of(st,nt),4)}, {ar(acc(i,nt),4)}")
        ld_o(st, sPo)
        a(f"s_add_u32 s{sKw}, s{sKw}, 65536")
        a(f"s_add_u32 s{sKo}, s{sKo}, 7168")
    a(f"s_add_u32 s{sCnt}, s{sCnt}, 1")
    a(f"s_cmp_lt_u32 s{sCnt}, {32//NST}")
    a("s_cbranch_scc1 L_op_loop")
    stamp(a, 2)
    a("s_waitcnt vmcnt(0) lgkmcnt(0)")
    a("s_barrier")
    a(f"v_add_u32 v{vT+3}, 57344, v{vO0}")
    for wv in range(4):
        a(f"s_cmp_lg_u32 s{sW}, {wv}")
        a(f"s_cbranch_scc1 L_epw{wv}")
        for i in range(4):
            if i == wv: continue
            slot = (wv - i - 1) & 3
            base = i * 21504 + slot * 7168
            vb, off = (vO0, base) if base + 6144 < 65536 else (vT + 3, base - 57344)
            if i == 3 or (i == 2):
                pass
            for nt in range(7):
                o_ = base + nt * 1024
                if o_ < 65536:
                    a(f"ds_write_b128 v{vO0}, {ar(acc(i,nt),4)} offset:{o_}")
                else:
                    a(f"ds_write_b128 v{vT+3}, {ar(acc(i,nt),4)} offset:{o_-57344}")
        for nt in range(7):
            for r in range(4):
                a(f"v_accvgpr_read_b32 v{32+nt*4+r}, a{acc(wv,nt)+r}")
        a.lab(f"L_epw{wv}")
    a("s_waitcnt lgkmcnt(0)")
    a("s_barrier")
    a(f"s_mul_i32 s4, s{sW}, 21504")
    a(f"v_add_u32 v{vT}, s4, v{vO0}")
    a(f"v_lshlrev_b32 v{vT+2}, 12, v{c}")
    a(f"v_lshl_add_u32 v{vT+2}, v{g}, 3, v{vT+2}")
    a(f"s_lshl_b32 s4, s{sW}, 5")
    a(f"v_add_u32 v{vT+2}, s4, v{vT+2}")
    R = 64
    for nt in range(7):
        for sl in range(3):
            a(f"ds_read_b128 {vr(R+(nt*3+sl)*4,4)}, v{vT} offset:{sl*7168+nt*1024}")
    for nt in range(7):
        a(f"s_waitcnt lgkmcnt({min(15, (6-nt)*3)})")
        for r in range(4):
            x = 32 + nt * 4 + r
            b0 = R + nt * 12 + r
            a(f"v_add_f32 v{b0}, v{b0}, v{b0+4}")
            a(f"v_add_f32 v{x}, v{x}, v{b0+8}")
            a(f"v_add_f32 v{x}, v{x}, v{b0}")
        x = 32 + nt * 4
        O = 160 + nt * 2
        a(f"v_cvt_pk_bf16_f32 v{O}, v{x}, v{x+1}")
        a(f"v_cvt_pk_bf16_f32 v{O+1}, v{x+2}, v{x+3}")
        a(f"s_mov_b32 s5, {nt*65536}")
        a(f"buffer_store_dwordx2 {vr(O,2)}, v{vT+2}, {sr(sOUT,4)}, s5 offen {os.environ.get('OUTF','')}")
    a.lab("L_op_fin")
    if DIAG:
        a("s_waitcnt vmcnt(0)")
        stamp(a, 3)
        diag_dump(a, 16, sW, 129 << 20)
    a.lab("L_op_end")
    a("s_endpgm")
    return AF + 32


HEADER = open("cdna_kernels/" + NAME + ".s.ref").read().split("; Override launch")[0]

def kd(name, vgpr, accum, sgpr=102):
    return f""".amdhsa_kernel {name}
  .amdhsa_next_free_vgpr {vgpr}
  .amdhsa_next_free_sgpr {sgpr}
  .amdhsa_accum_offset {accum}
  .amdhsa_group_segment_fixed_size 0
  .amdhsa_kernarg_size 104
  .amdhsa_user_sgpr_count 2
  .amdhsa_user_sgpr_kernarg_segment_ptr 1
  .amdhsa_system_sgpr_workgroup_id_x 1
.end_amdhsa_kernel
"""

def main():
    out = HEADER
    out += "; @launch kernel=attn_kernel grid=(256,1,1) block=(512,1,1) lds=163840\n"
    out += "; @launch kernel=oproj_kernel grid=(256,1,1) block=(256,1,1) lds=114688\n"
    out += '.amdgcn_target "amdgcn-amd-amdhsa--gfx950"\n.text\n'
    for name, fn in (("attn_kernel", gen_attn), ("oproj_kernel", gen_oproj)):
        a = A()
        fn(a)
        out += f".globl {name}\n.p2align 8\n.type {name},@function\n" + a.text()
    out += '.section .rodata,"a"\n.p2align 6\n'
    out += kd("attn_kernel", 256, 256)
    out += ".p2align 6\n"
    out += kd("oproj_kernel", 368, 256)
    path = sys.argv[1] if len(sys.argv) > 1 else "cdna_kernels/" + NAME + ".s"
    open(path, "w").write(out)

if __name__ == "__main__":
    main()
```

```python
import sys, os, struct
DIAG = int(os.environ.get("DIAG", "0"))
NAME = "concat_heads__mha_block_cached__mha_block_cached__near_ridge"
PF_WQ = int(os.environ.get("PF_WQ", "1"))
PF_WO = int(os.environ.get("PF_WO", "1"))
OP_DEPTH = int(os.environ.get("OP_DEPTH", "4"))
PRIO = int(os.environ.get("PRIO", "1"))

class A:
    def __init__(self):
        self.l = []
    def __call__(self, s):
        self.l.append("    " + s)
    def lab(self, s):
        self.l.append(s + ":")
    def text(self):
        return "\n".join(self.l) + "\n"

def vr(a, n):
    return f"v[{a}:{a+n-1}]" if n > 1 else f"v{a}"
def ar(a, n):
    return f"a[{a}:{a+n-1}]" if n > 1 else f"a{a}"
def sr(a, n):
    return f"s[{a}:{a+n-1}]" if n > 1 else f"s{a}"

SCALE_C = 0.08838834764831845 * 1.4426950408889634
def f32bits(x):
    return struct.unpack("<I", struct.pack("<f", x))[0]

def stamp(a, i):
    if DIAG:
        a("s_waitcnt lgkmcnt(0)")
        a(f"s_mem{'real' if DIAG == 2 else ''}time s[{60+2*i}:{61+2*i}]")
        a("s_waitcnt lgkmcnt(0)")
def diag_dump(a, wsreg, sW, region, lg=2):
    if not DIAG: return
    if DIAG == 2:
        u = region
        a(f"s_cmp_lg_u32 s{sW}, 0")
        a(f"s_cbranch_scc1 L_dd{u}")
        if lg == 3:
            a("s_and_b32 s84, s2, 63")
            a("s_lshr_b32 s85, s2, 6")
            a("s_cmp_lg_u32 s84, s85")
            a(f"s_cbranch_scc1 L_dd{u}")
            a(f"s_add_u32 s88, s{wsreg}, {200<<20}")
            a(f"s_addc_u32 s89, s{wsreg+1}, 0")
            a("s_mov_b32 s90, 256")
            a("s_mov_b32 s91, 0x00020000")
            a("s_lshl_b32 s84, s85, 4")
            a("v_mov_b32 v1, s84")
            for i in range(4):
                a(f"s_sub_u32 s85, s{62+2*i}, s{60+2*i}")
                a("v_mov_b32 v2, s85")
                a(f"buffer_store_dword v2, v1, s[88:91], 0 offen offset:{i*4}")
                a("s_waitcnt vmcnt(0)")
        else:
            a("s_cmp_lg_u32 s2, 0")
            a(f"s_cbranch_scc1 L_dd{u}")
            a(f"s_add_u32 s88, s{wsreg}, {200<<20}")
            a(f"s_addc_u32 s89, s{wsreg+1}, 0")
            a("s_mov_b32 s90, 64")
            a("s_mov_b32 s91, 0x00020000")
            a("s_load_dwordx2 s[84:85], s[0:1], 88")
            a("v_and_b32 v1, 63, v0")
            a("v_lshlrev_b32 v1, 2, v1")
            a("buffer_load_dword v2, v1, s[88:91], 0 offen")
            a("s_waitcnt vmcnt(0) lgkmcnt(0)")
            a("s_mov_b32 s86, 64")
            a("s_mov_b32 s87, 0x00020000")
            a("buffer_store_dword v2, v1, s[84:87], 0 offen")
            a("s_waitcnt vmcnt(0)")
        a.lab(f"L_dd{u}")
        return
    a("s_memrealtime s[80:81]")
    a("s_getreg_b32 s82, hwreg(HW_REG_HW_ID)")
    a("s_getreg_b32 s83, hwreg(HW_REG_XCC_ID)")
    a("s_waitcnt lgkmcnt(0)")
    a(f"s_lshl_b32 s84, s2, {lg}")
    a(f"s_add_u32 s84, s84, s{sW}")
    a(f"s_lshl_b32 s84, s84, 7")
    a(f"s_add_u32 s84, s84, {region}")
    a(f"s_add_u32 s88, s{wsreg}, s84")
    a(f"s_addc_u32 s89, s{wsreg+1}, 0")
    a("s_mov_b32 s90, 128")
    a("s_mov_b32 s91, 0x00020000")
    a("v_mov_b32 v1, 0")
    for i in range(24):
        a(f"v_mov_b32 v2, s{60+i}")
        a(f"buffer_store_dword v2, v1, s[88:91], 0 offen offset:{i*4}")
        a("s_waitcnt vmcnt(0)")

class VM:
    def __init__(self):
        self.ops = []
    def issue(self, tag, n):
        self.ops += [tag] * n
    def need(self, *tags):
        last = max(i for i, t in enumerate(self.ops) if t in tags)
        for t in tags:
            assert t in self.ops, t
        return len(self.ops) - 1 - last

KVF = os.environ.get("KVF", "")
WQF = os.environ.get("WQF", "")
KV_START = int(os.environ.get("KV_START", "20"))

def gen_attn(a):
    PK = int(os.environ.get("PK", "1"))
    STAG = int(os.environ.get("STAG", "0"))
    sW = 3
    sWq = 99
    sE = 96
    sX, sWQ, sK, sV, sO, sWO = 20, 24, 28, 32, 36, 56
    sSlotR, sSlotW = 40, 41
    sM0kv = 42
    sWQoff = 43
    sXoff = 44
    sKVoff = 45
    sCnt = 46
    sC = 47
    sT0, sT1, sT2, sT3 = 48, 49, 50, 51
    sM0q = 92
    sM0x = 93
    vLane = 1
    vWQd = 2
    vXd = 4
    vKd = 6
    vVd = 10
    vA0k, vA0v = 11, 12
    vOst = 13
    vAd = 14
    vAv = 22
    vM = 26
    vLp = 28
    vT = 30
    vPFd = 44
    vP = 48
    ACC = 64
    FR = 128
    QF = 192
    SS = 224
    QB = [128, 160]
    XB = [192, 208]
    WQ0, X0 = 65536, 131072
    MF = "v_mfma_f32_32x32x16_bf16"

    def acc(T): return ACC + T * 16
    def ss(t): return SS + t * 16
    def pf(t, s_): return vP + (t * 2 + s_) * 4

    a.lab("attn_kernel")
    a("s_cmp_ge_u32 s2, 256")
    a("s_cbranch_scc1 L_attn_end")
    stamp(a, 0)
    if DIAG: a("s_memrealtime s[78:79]")
    a("s_and_b32 s4, s2, 7")
    a("s_lshr_b32 s5, s2, 3")
    a("s_lshr_b32 s6, s4, 2")
    a("s_and_b32 s7, s4, 3")
    a("s_lshl_b32 s7, s7, 2")
    a("s_and_b32 s8, s5, 3")
    a("s_add_u32 s7, s7, s8")
    a("s_lshr_b32 s8, s5, 2")
    a("s_mul_i32 s9, s6, 40")
    a("s_add_u32 s10, s0, s9")
    a("s_addc_u32 s11, s1, 0")
    a("s_load_dwordx8 s[12:19], s[10:11], 0")
    a("s_load_dwordx2 s[94:95], s[10:11], 32")
    a("s_load_dwordx2 s[52:53], s[0:1], 96")
    a(f"v_and_b32 v{vLane}, 63, v0")
    a("v_lshrrev_b32 v2, 6, v0")
    a("s_nop 0")
    a(f"v_readfirstlane_b32 s{sW}, v2")
    a(f"s_mov_b32 s{sC}, 0x{f32bits(SCALE_C):08x}")
    a(f"s_mov_b32 s100, 0x{f32bits(SCALE_C):08x}")
    a(f"s_mov_b32 s101, 0x{f32bits(SCALE_C):08x}")
    g, c, rp, cp, hh_, m_ = 36, 37, 38, 39, 42, 43
    t0, t1 = 40, 41
    a(f"v_lshrrev_b32 v{g}, 4, v{vLane}")
    a(f"v_and_b32 v{c}, 15, v{vLane}")
    a(f"v_bfe_u32 v{rp}, v{vLane}, 2, 2")
    a(f"v_and_b32 v{cp}, 3, v{vLane}")
    a(f"v_lshrrev_b32 v{hh_}, 5, v{vLane}")
    a(f"v_and_b32 v{m_}, 31, v{vLane}")
    a(f"s_and_b32 s{sWq}, s{sW}, 3")
    a(f"s_lshr_b32 s{sE}, s{sW}, 2")
    a(f"s_lshl_b32 s{sM0kv}, s{sW}, 12")
    a(f"s_lshl_b32 s{sM0q}, s{sW}, 11")
    a(f"s_add_u32 s{sM0x}, s{sM0q}, {X0}")
    a(f"s_add_u32 s{sM0q}, s{sM0q}, {WQ0}")
    a(f"v_lshlrev_b32 v{t1}, 2, v{hh_}")
    a(f"v_xor_b32 v{t1}, v{t1}, v{c}")
    a(f"v_lshlrev_b32 v{t1}, 4, v{t1}")
    a(f"v_lshl_add_u32 v{t1}, v{hh_}, 13, v{t1}")
    a(f"v_and_b32 v{t0}, 1, v{g}")
    a(f"v_lshl_add_u32 v{t1}, v{t0}, 8, v{t1}")
    a(f"s_lshl_b32 s{sT0}, s{sW}, 15")
    a(f"v_add_u32 v{vWQd}, s{sT0}, v{t1}")
    a(f"v_xor_b32 v{t1}, 128, v{vWQd}")
    a(f"v_add_u32 v{vWQd+1}, {2*8192-1024}, v{t1}")
    a(f"v_and_b32 v{t1}, 7, v{vLane}")
    a(f"v_xor_b32 v{t0}, v{g}, v{t1}")
    a(f"v_lshlrev_b32 v{t0}, 4, v{t0}")
    a(f"v_lshrrev_b32 v{t1}, 3, v{vLane}")
    a(f"v_lshl_add_u32 v{t0}, v{t1}, 11, v{t0}")
    a(f"v_add_u32 v{vXd}, s{sT0}, v{t0}")
    a(f"v_xor_b32 v{t0}, 64, v{vXd}")
    a(f"v_add_u32 v{vXd+1}, {8*2048-1024}, v{t0}")
    a("s_waitcnt lgkmcnt(0)")
    a("s_mul_i32 s9, s8, 229376")
    a(f"s_add_u32 s{sX}, s12, s9")
    a(f"s_addc_u32 s{sX+1}, s13, 0")
    a(f"s_mov_b32 s{sX+2}, 229376")
    a(f"s_mov_b32 s{sX+3}, 0x00020000")
    a("s_lshl_b32 s9, s7, 9")
    a(f"s_add_u32 s{sWQ}, s18, s9")
    a(f"s_addc_u32 s{sWQ+1}, s19, 0")
    a(f"s_sub_u32 s{sWQ+2}, 8388608, s9")
    a(f"s_mov_b32 s{sWQ+3}, 0x00020000")
    a(f"s_mov_b32 s{sWQoff}, 0")
    a(f"s_mov_b32 s{sXoff}, 0")

    vm = VM()
    XF = os.environ.get("XF", "")
    def wq_pieces(cn):
        q = cn & 3
        def p0():
            a(f"s_add_u32 m0, s{sM0q}, {q*16384}")
            a("s_nop 0")
            a(f"buffer_load_dwordx4 v{vWQd}, {sr(sWQ,4)}, s{sWQoff} offen {WQF} lds")
            vm.issue(("wq", cn), 1)
        def p1():
            a(f"s_add_u32 m0, s{sM0q}, {q*16384}")
            a("s_nop 0")
            a(f"buffer_load_dwordx4 v{vWQd+1}, {sr(sWQ,4)}, s{sWQoff} offen offset:1024 {WQF} lds")
            if not os.environ.get("NOADV"): a(f"s_add_u32 s{sWQoff}, s{sWQoff}, {32*8192}")
            vm.issue(("wq", cn), 1)
        return [p0, p1]
    def x_pieces(m):
        q = m & 1
        def p0():
            a(f"s_add_u32 m0, s{sM0x}, {q*16384}")
            a("s_nop 0")
            a(f"buffer_load_dwordx4 v{vXd}, {sr(sX,4)}, s{sXoff} offen {XF} lds")
            vm.issue(("x", m), 1)
        def p1():
            a(f"s_add_u32 m0, s{sM0x}, {q*16384}")
            a("s_nop 0")
            a(f"buffer_load_dwordx4 v{vXd+1}, {sr(sX,4)}, s{sXoff} offen offset:1024 {XF} lds")
            if not os.environ.get("NOADV"): a(f"s_add_u32 s{sXoff}, s{sXoff}, 128")
            vm.issue(("x", m), 1)
        return [p0, p1]
    def kv_voff(isK, i):
        return vKd + i if isK else vVd
    def kv_pieces(n):
        isK = n % 2 == 0
        srd = sK if isK else sV
        out = []
        for i in range(4):
            def p(i=i):
                a(f"s_add_u32 m0, s{sM0kv}, {n*32768}")
                a(f"s_mov_b32 s{sT0}, {(n>>1)*16384}")
                a(f"buffer_load_dwordx4 v{kv_voff(isK,i)}, {sr(srd,4)}, s{sT0} offen offset:{i*1024} {KVF} lds")
                vm.issue(("kv", n), 1)
            out.append(p)
        return out

    for p in x_pieces(0) + wq_pieces(0) + wq_pieces(1) + x_pieces(1) + wq_pieces(2) + wq_pieces(3):
        p()

    a(f"v_bfe_u32 v{t0}, v{m_}, 1, 3")
    a(f"v_xor_b32 v{t0}, v{t0}, v{hh_}")
    a(f"v_lshlrev_b32 v{t0}, 4, v{t0}")
    a(f"v_lshl_add_u32 v{t0}, v{m_}, 7, v{t0}")
    a(f"s_lshl_b32 s{sT0}, s{sWq}, 12")
    a(f"s_add_u32 s{sT0}, s{sT0}, {X0}")
    a(f"v_add_u32 v{vAd+4}, s{sT0}, v{t0}")
    for k in range(1, 4):
        a(f"v_xor_b32 v{vAd+4+k}, {k<<5}, v{vAd+4}")
    a(f"v_and_b32 v{t0}, 1, v{g}")
    a(f"v_and_b32 v{t1}, 1, v{cp}")
    a(f"v_lshl_or_b32 v{t0}, v{t0}, 1, v{t1}")
    a(f"v_lshl_or_b32 v{t0}, v{rp}, 2, v{t0}")
    a(f"v_lshlrev_b32 v{t0}, 4, v{t0}")
    a(f"v_lshrrev_b32 v{t1}, 1, v{cp}")
    a(f"v_lshl_or_b32 v{t0}, v{t1}, 3, v{t0}")
    a(f"v_lshl_add_u32 v{t1}, v{hh_}, 3, v{rp}")
    a(f"v_lshl_add_u32 v{t0}, v{t1}, 9, v{t0}")
    a(f"s_lshl_b32 s{sT0}, s{sE}, 8")
    a(f"s_add_u32 s{sT0}, s{sT0}, {WQ0}")
    a(f"v_add_u32 v{vAd}, s{sT0}, v{t0}")
    for k in range(1, 4):
        a(f"v_xor_b32 v{vAd+k}, {k<<6}, v{vAd}")
    a(f"s_lshl_b32 s{sT0}, s{sWq}, 12")
    a(f"v_xor_b32 v{t0}, v{g}, v{c}")
    a(f"v_lshlrev_b32 v{t0}, 4, v{t0}")
    a(f"v_lshl_add_u32 v{t0}, v{g}, 8, v{t0}")
    a(f"v_add_u32 v{vKd}, s{sT0}, v{t0}")
    for i in range(1, 4):
        a(f"v_xor_b32 v{vKd+i}, {i<<6}, v{vKd}")
    a(f"v_lshlrev_b32 v{t0}, 2, v{g}")
    a(f"v_xor_b32 v{t0}, v{t0}, v{c}")
    a(f"v_lshlrev_b32 v{t0}, 4, v{t0}")
    a(f"v_lshl_add_u32 v{t0}, v{g}, 8, v{t0}")
    a(f"v_add_u32 v{vVd}, s{sT0}, v{t0}")
    a(f"s_lshl_b32 s{sT1}, s{sE}, 14")
    a(f"v_xor_b32 v{t0}, v{hh_}, v{c}")
    a(f"v_lshlrev_b32 v{t0}, 4, v{t0}")
    a(f"v_lshl_add_u32 v{t0}, v{m_}, 8, v{t0}")
    a(f"v_add_u32 v{vA0k}, s{sT1}, v{t0}")
    a(f"v_and_b32 v{t0}, 1, v{g}")
    a(f"v_lshrrev_b32 v{t1}, 1, v{cp}")
    a(f"v_lshl_or_b32 v{t0}, v{t0}, 1, v{t1}")
    a(f"v_lshl_or_b32 v{t0}, v{rp}, 2, v{t0}")
    a(f"v_lshlrev_b32 v{t0}, 4, v{t0}")
    a(f"v_and_b32 v{t1}, 1, v{cp}")
    a(f"v_lshl_or_b32 v{t0}, v{t1}, 3, v{t0}")
    a(f"v_lshl_add_u32 v{t1}, v{hh_}, 2, v{rp}")
    a(f"v_lshl_add_u32 v{t0}, v{t1}, 8, v{t0}")
    a(f"v_add_u32 v{vA0v}, s{sT1}, v{t0}")
    a(f"v_and_b32 v{t0}, 1, v{g}")
    a(f"v_lshlrev_b32 v{t0}, 10, v{t0}")
    a(f"v_lshl_add_u32 v{t0}, v{hh_}, 8, v{t0}")
    a(f"v_lshl_add_u32 v{t0}, v{c}, 4, v{t0}")
    a(f"s_lshl_b32 s{sT0}, s{sWq}, 11")
    a(f"v_add_u32 v{t0}, s{sT0}, v{t0}")
    a(f"v_mov_b32 v{t1}, 0x40000000")
    a(f"v_cmp_gt_u32 vcc, 7168, v{t0}")
    a("s_nop 1")
    a(f"v_cndmask_b32 v{vOst}, v{t1}, v{t0}, vcc")
    a(f"v_lshlrev_b32 v27, 4, v{vLane}")
    a("s_lshl_b32 s7, s7, 1")
    a(f"s_add_u32 s7, s7, s{sE}")
    a("s_lshl_b32 s9, s8, 5")
    a("s_add_u32 s9, s9, s7")
    a("s_lshl_b32 s10, s9, 15")
    a("s_lshl_b32 s9, s9, 17")
    a(f"s_add_u32 s{sK}, s14, s9")
    a(f"s_addc_u32 s{sK+1}, s15, 0")
    a(f"s_mov_b32 s{sK+2}, 131072")
    a(f"s_mov_b32 s{sK+3}, 0x00020000")
    a(f"s_add_u32 s{sV}, s16, s9")
    a(f"s_addc_u32 s{sV+1}, s17, 0")
    a(f"s_mov_b32 s{sV+2}, 131072")
    a(f"s_mov_b32 s{sV+3}, 0x00020000")
    a(f"s_add_u32 s{sWO}, s94, s10")
    a(f"s_addc_u32 s{sWO+1}, s95, 0")
    a(f"s_mov_b32 s{sWO+2}, 32768")
    a(f"s_mov_b32 s{sWO+3}, 0x00020000")
    a("s_lshl_b32 s9, s6, 3")
    a("s_add_u32 s9, s9, s8")
    a("s_lshl_b32 s9, s9, 7")
    a("s_lshl_b32 s10, s7, 2")
    a("s_add_u32 s9, s9, s10")
    a("s_mul_i32 s9, s9, 7168")
    a(f"s_add_u32 s{sO}, s52, s9")
    a(f"s_addc_u32 s{sO+1}, s53, 0")
    a(f"s_mov_b32 s{sO+2}, 28672")
    a(f"s_mov_b32 s{sO+3}, 0x00020000")
    a(f"s_mov_b32 s{sSlotR}, 0")
    a(f"s_mov_b32 s{sSlotW}, 131072")
    a(f"s_mov_b32 s{sKVoff}, 32768")
    for i in range(64):
        a(f"v_mov_b32 v{ACC+i}, 0")

    def q_rd_x(m):
        xb = m & 1
        for k in range(4):
            a(f"ds_read_b128 {vr(XB[xb]+k*4,4)}, v{vAd+4+k} offset:{(m&1)*16384}")
    def q_rd(buf, f, q):
        ks, mt = f >> 2, f & 3
        for hh in range(2):
            a(f"ds_read_b64_tr_b16 {vr(QB[buf]+f*4+hh*2,2)}, v{vAd+mt} offset:{q*16384+ks*8192+hh*2048}")
    def q_mm(buf, f, xb, par):
        ks, mt = f >> 2, f & 3
        a(f"{MF} {vr(acc(mt),16)}, {vr(QB[buf]+f*4,4)}, {vr(XB[xb]+(par*2+ks)*4,4)}, {vr(acc(mt),16)}")

    stamp(a, 1)
    a(f"s_waitcnt vmcnt({vm.need(('x',0),('wq',0))})")
    a("s_barrier")
    q_rd_x(0)
    for f in range(8):
        q_rd(0, f, 0)

    kvq = kv_pieces(0) + kv_pieces(1)
    kv_sched = {}
    nit = 29 - KV_START
    for idx, p in enumerate(kvq):
        it = KV_START + (idx * nit) // len(kvq)
        kv_sched.setdefault(it, []).append(p)
    sPF = 98
    a(f"s_lshl_b32 s{sPF}, s{sWq}, 13")
    def pf_piece():
        a(f"buffer_load_dword v26, v27, {sr(sWO,4)}, s{sPF} offen")
        a(f"s_add_u32 s{sPF}, s{sPF}, 1024")
        vm.issue("pf", 1)
    PFD = 24 if False else 26
    EARLYR = int(os.environ.get("EARLYR", "0"))
    BURST = int(os.environ.get("BURST", "0"))
    if EARLYR:
        EREG = {2: SS, 3: SS + 16}
        def kvr_pieces(n):
            isK = n % 2 == 0
            srd = sK if isK else sV
            out = []
            for i in range(4):
                def p(i=i):
                    a(f"s_mov_b32 s{sT0}, {(n>>1)*16384}")
                    a(f"buffer_load_dwordx4 {vr(EREG[n]+i*4,4)}, v{kv_voff(isK,i)}, {sr(srd,4)}, s{sT0} offen offset:{i*1024} {KVF}")
                    vm.issue(("kvr", n), 1)
                out.append(p)
            return out
        def wr_pieces(n):
            def p():
                a(f"s_waitcnt vmcnt({vm.need(('kvr', n))})")
                a(f"s_add_u32 s{sT0}, s{sM0kv}, {n*32768}")
                a(f"v_add_u32 v{vT}, s{sT0}, v27")
                for i in range(4):
                    a(f"ds_write_b128 v{vT}, {vr(EREG[n]+i*4,4)} offset:{i*1024}")
            return [p]
        kv_sched = {}
        kvq = kv_pieces(0) + kv_pieces(1) + kvr_pieces(2) + kvr_pieces(3)
        nit = 28 - KV_START
        for idx, p in enumerate(kvq):
            it = KV_START + (idx * nit) // len(kvq)
            kv_sched.setdefault(it, []).append(p)
        kv_sched.setdefault(29, []).extend(wr_pieces(2))
        kv_sched.setdefault(31, []).extend(wr_pieces(3))
    elif BURST:
        kv_sched = {}
        if BURST == 1:
            for idx, p in enumerate(kvq):
                it = KV_START + (idx * nit) // len(kvq)
                kv_sched.setdefault(it, []).append(p)
        kv_sched.setdefault(29, []).extend(kv_pieces(2))
        kv_sched.setdefault(31, []).extend(kv_pieces(3))
    else:
        if PF_WO: kv_sched.setdefault(29, []).append(pf_piece)
        kv_sched.setdefault(29, []).extend(kv_pieces(2))
        kv_sched.setdefault(31, []).extend(kv_pieces(3))
    sPhase, sRelax = 90, 91
    NB = 8 if BURST == 1 else 16
    if BURST:
        a("s_lshr_b32 s9, s2, 3")
        a("s_mul_i32 s10, s9, 52")
        a("s_lshr_b32 s10, s10, 8")
        a("s_mul_i32 s10, s10, 5")
        a(f"s_sub_u32 s{sPhase}, s9, s10")
        a(f"s_mov_b32 s{sRelax}, 0")

    def q_iter(cn):
        buf = cn & 1
        m = cn >> 1
        xb = m & 1
        has_next = cn < 31
        needs = []
        if has_next: needs.append(("wq", cn + 1))
        if cn % 2 == 1 and m + 1 <= 15: needs.append(("x", m + 1))
        w = vm.need(*needs) if needs else None
        if BURST and cn < KV_START:
            lid = f"{cn&3}"
            a(f"s_cmp_lg_u32 s{sRelax}, 0")
            a(f"s_cbranch_scc1 L_rlx{lid}")
            a(f"s_waitcnt vmcnt({w}) lgkmcnt(0)")
            a(f"s_branch L_go{lid}")
            a.lab(f"L_rlx{lid}")
            a(f"s_waitcnt vmcnt({w+NB}) lgkmcnt(0)")
            a(f"s_sub_u32 s{sRelax}, s{sRelax}, 1")
            a.lab(f"L_go{lid}")
        elif w is not None:
            a(f"s_waitcnt vmcnt({w}) lgkmcnt(0)")
        else:
            a("s_waitcnt lgkmcnt(0)")
        a("s_barrier")
        if BURST and cn < KV_START and (cn & 3) == 0:
            a(f"s_cmp_lg_u32 s{sCnt}, s{sPhase}")
            a("s_cbranch_scc1 L_noburst")
            sv = list(vm.ops)
            if BURST == 2:
                for p in kv_pieces(0) + kv_pieces(1): p()
            for i in range(8): pf_piece()
            vm.ops = sv
            a(f"s_mov_b32 s{sRelax}, 2")
            a.lab("L_noburst")
        pieces = []
        if cn % 2 == 0 and m + 2 <= 15: pieces += x_pieces(m + 2)
        if cn + 4 <= 31: pieces += wq_pieces(cn + 4)
        pieces += kv_sched.get(cn, [])
        slots = {}
        for i, p in enumerate(pieces):
            slots.setdefault((i * 8) // max(len(pieces), 1), []).append(p)
        rds = []
        if has_next:
            rds += [(lambda f=f: q_rd(buf ^ 1, f, (cn + 1) & 3)) for f in range(8)]
        if cn % 2 == 1 and m + 1 <= 15:
            rds.append(lambda: q_rd_x(m + 1))
        RPM = int(os.environ.get("RPM", "2"))
        for f in range(8):
            q_mm(buf, f, xb, cn & 1)
            for r_ in rds[f*RPM:(f+1)*RPM]:
                r_()
            for p in slots.get(f, []):
                p()
        return w

    ngrp = KV_START // 4
    a(f"s_mov_b32 s{sCnt}, 0")
    a.lab("L_qp_loop")
    ws0 = [q_iter(cn) for cn in range(4)]
    a(f"s_add_u32 s{sCnt}, s{sCnt}, 1")
    a(f"s_cmp_lt_u32 s{sCnt}, {ngrp}")
    a("s_cbranch_scc1 L_qp_loop")
    save = a.l
    for gI in range(1, ngrp):
        a.l = []
        wsg = [q_iter(gI * 4 + k) for k in range(4)]
        assert wsg == ws0, (wsg, ws0)
    a.l = save
    for cn in range(KV_START, 32):
        q_iter(cn)

    stamp(a, 2)
    a("s_nop 7")
    a("s_nop 3")
    NEGM = 32
    for mt in range(4):
        for s_ in range(2):
            q = QF + (mt * 2 + s_) * 4
            x = acc(mt) + s_ * 8
            for j in range(8):
                a(f"v_mul_f32 v{x+j}, s{sC}, v{x+j}")
            for j in range(4):
                a(f"v_cvt_pk_bf16_f32 v{q+j}, v{x+2*j}, v{x+2*j+1}")
    for i in range(64):
        a(f"v_mov_b32 v{ACC+i}, 0")
    for i in range(16):
        a(f"v_mov_b32 v{NEGM+i}, 0")
    a(f"v_mov_b32 v{vLp}, 0")
    a(f"v_mov_b32 v{vLp+1}, 0")
    sFirst = 97
    a(f"s_mov_b32 s{sFirst}, 1")

    def adv_slot(s):
        a(f"s_add_u32 s{s}, s{s}, 32768")
        a(f"s_cmp_ge_u32 s{s}, 163840")
        a(f"s_cselect_b32 s{s}, 0, s{s}")
    def dma_kv_pieces(isK):
        srd = sK if isK else sV
        out = []
        for i in range(4):
            def p(i=i):
                a(f"s_add_u32 m0, s{sSlotW}, s{sM0kv}")
                a("s_nop 0")
                if not os.environ.get("X_NODMA"): a(f"buffer_load_dwordx4 v{kv_voff(isK,i)}, {sr(srd,4)}, s{sKVoff} offen offset:{i*1024} {KVF} lds")
                if i == 3:
                    if not isK and not os.environ.get("NOADVKV"):
                        a(f"s_add_u32 s{sKVoff}, s{sKVoff}, 16384")
                    adv_slot(sSlotW)
            out.append(p)
        return out
    def k_addr():
        a(f"v_add_u32 v{vAd}, s{sSlotR}, v{vA0k}")
        for ks in range(1, 8):
            a(f"v_xor_b32 v{vAd+ks}, {ks<<5}, v{vAd}")
        adv_slot(sSlotR)
    def v_addr():
        a(f"v_add_u32 v{vAv}, s{sSlotR}, v{vA0v}")
        for T in range(1, 4):
            a(f"v_xor_b32 v{vAv+T}, {T<<6}, v{vAv}")
        adv_slot(sSlotR)
    XR_, YR_ = FR, FR + 32
    def rdk(t, ks):
        if not os.environ.get("X_NOLDS"): a(f"ds_read_b128 {vr(XR_+ks*4,4)}, v{vAd+ks} offset:{t*8192}")
    def rdv(t, j):
        s_, T = j >> 2, j & 3
        for hh in range(2):
            if not os.environ.get("X_NOLDS"): a(f"ds_read_b64_tr_b16 {vr(YR_+j*4+hh*2,2)}, v{vAv+T} offset:{(t*32+s_*16+hh*8)*256}")
    def mmk(t, ks):
        cin = vr(NEGM,16) if ks == 0 else vr(ss(t),16)
        a(f"{MF} {vr(ss(t),16)}, {vr(XR_+ks*4,4)}, {vr(QF+ks*4,4)}, {cin}")
    def mmv(t, j):
        s_, T = j >> 2, j & 3
        a(f"{MF} {vr(acc(T),16)}, {vr(YR_+j*4,4)}, {vr(pf(t,s_),4)}, {vr(acc(T),16)}")
    def cvt_ops(t):
        ops = []
        for s_ in range(2):
            p = pf(t, s_)
            x = ss(t) + s_ * 8
            for j in range(4):
                ops.append(f"v_cvt_pk_bf16_f32 v{p+j}, v{x+2*j}, v{x+2*j+1}")
        return ops
    NOSM = os.environ.get("X_NOSM")
    uid = [0]
    rare = []
    def sm_a(t, first_chk):
        if NOSM: return []
        uid[0] += 1
        u = uid[0]
        ops = []
        o = ops.append
        vals = [ss(t) + r for r in range(16)]
        mx, t1_ = vT, vT + 1
        o(f"v_max3_f32 v{mx}, v{vals[0]}, v{vals[1]}, v{vals[2]}")
        o(f"v_max3_f32 v{t1_}, v{vals[3]}, v{vals[4]}, v{vals[5]}")
        o(f"v_max3_f32 v{mx}, v{mx}, v{vals[6]}, v{vals[7]}")
        o(f"v_max3_f32 v{t1_}, v{t1_}, v{vals[8]}, v{vals[9]}")
        o(f"v_max3_f32 v{mx}, v{mx}, v{vals[10]}, v{vals[11]}")
        o(f"v_max3_f32 v{t1_}, v{t1_}, v{vals[12]}, v{vals[13]}")
        o(f"v_max3_f32 v{mx}, v{mx}, v{vals[14]}, v{vals[15]}")
        o(f"v_max_f32 v{mx}, v{mx}, v{t1_}")
        if first_chk:
            o(f"s_branch L_rare{u}\nL_back{u}:")
        else:
            o(f"v_cmp_lt_f32 vcc, 0x41000000, v{mx}\n    s_cbranch_vccnz L_rare{u}\nL_back{u}:")
        r = [f"L_rare{u}:"]
        R = lambda x: r.append("    " + x)
        R("s_nop 15")
        R(f"v_mov_b32 v{t1_}, v{mx}")
        R("s_nop 1")
        R(f"v_permlane32_swap_b32 v{mx}, v{t1_}")
        R("s_nop 1")
        R(f"v_max_f32 v{mx}, v{mx}, v{t1_}")
        if not first_chk:
            R(f"v_max_f32 v{mx}, 0, v{mx}")
            R(f"v_sub_f32 v{t1_}, 0, v{mx}")
            R(f"v_exp_f32 v{t1_}, v{t1_}")
        for i in range(16):
            R(f"v_sub_f32 v{NEGM+i}, v{NEGM+i}, v{mx}")
        for i in range(16):
            R(f"v_sub_f32 v{vals[i]}, v{vals[i]}, v{mx}")
        if not first_chk:
            R(f"v_mul_f32 v{vLp}, v{vLp}, v{t1_}")
            R(f"v_mul_f32 v{vLp+1}, v{vLp+1}, v{t1_}")
            for i in range(64):
                R(f"v_mul_f32 v{ACC+i}, v{ACC+i}, v{t1_}")
            for i in range(16):
                R(f"v_mul_f32 v{ss(1-t)+i}, v{ss(1-t)+i}, v{t1_}")
            for x in cvt_ops(1 - t):
                R(x)
        R("s_nop 1")
        R(f"s_branch L_back{u}")
        rare.append("\n".join(r))
        for x in vals[:8]:
            o(f"v_exp_f32 v{x}, v{x}")
        return ops
    def sm_b(t):
        if NOSM: return []
        ops = []
        o = ops.append
        vals = [ss(t) + r for r in range(16)]
        for x in vals[8:]:
            o(f"v_exp_f32 v{x}, v{x}")
        ops += cvt_ops(t)
        if PK:
            for i in range(0, 16, 2):
                o(f"v_pk_add_f32 {vr(vLp,2)}, {vr(vLp,2)}, {vr(vals[i],2)}")
        else:
            for i in range(0, 16, 2):
                o(f"v_add_f32 v{vLp}, v{vLp}, v{vals[i]}")
                o(f"v_add_f32 v{vLp+1}, v{vLp+1}, v{vals[i+1]}")
        return ops

    def group(mm, rd, ops, extra, nwait):
        k = 0
        for j in range(8):
            issued_now = min(2 * j, 8) * RD_PER[0] if rd else 0
            w = (7 - j) * nwait + issued_now
            mm(j)
            if rd and j < 4:
                rd(2 * j); rd(2 * j + 1)
            tgt = ((j + 1) * len(ops)) // 8
            while k < tgt:
                a(ops[k]); k += 1
            if j in extra:
                extra[j]()
    RD_PER = [1]

    NV = 9 if (PF_WO and not BURST) else 8
    a("s_waitcnt vmcnt(0) lgkmcnt(0)" if EARLYR else ("s_waitcnt vmcnt(8)" if BURST == 2 else "s_waitcnt vmcnt(12)"))
    a("s_barrier")
    k_addr()
    for ks in range(8):
        rdk(0, ks)
    a("s_waitcnt lgkmcnt(0)")
    for ks in range(8):
        mmk(0, ks)
    for ks in range(8):
        rdk(1, ks)
    a("s_nop 7")
    a("s_nop 3")
    for o in sm_a(0, True):
        a(o)
    a(f"s_mov_b32 s{sCnt}, 0")
    a.lab("L_at_loop")
    a(f"s_waitcnt vmcnt({NV}) lgkmcnt(0)")
    a("s_barrier")
    v_addr()
    if PF_WO and not BURST: pf_piece()
    pvv = dma_kv_pieces(False)
    pkk = dma_kv_pieces(True)
    RD_PER[0] = 2
    group(lambda j: mmk(1, j), lambda j: rdv(0, j), sm_b(0), {1: pkk[0], 3: pkk[1], 5: pkk[2], 7: pkk[3]}, 0)
    a(f"s_waitcnt vmcnt({NV})")
    a("s_barrier")
    k_addr()
    RD_PER[0] = 1
    a("s_waitcnt lgkmcnt(0)")
    group(lambda j: mmv(0, j), lambda j: rdk(0, j), ["s_nop 3"] + sm_a(1, False), {1: pvv[0], 3: pvv[1], 5: pvv[2], 7: pvv[3]}, 0)
    a(f"s_add_u32 s{sCnt}, s{sCnt}, 1")
    a(f"s_cmp_eq_u32 s{sCnt}, 8")
    a("s_cbranch_scc1 L_at_tail")
    RD_PER[0] = 2
    a("s_waitcnt lgkmcnt(0)")
    group(lambda j: mmk(0, j), lambda j: rdv(1, j), sm_b(1), {}, 0)
    RD_PER[0] = 1
    a("s_waitcnt lgkmcnt(0)")
    a("s_nop 1")
    group(lambda j: mmv(1, j), lambda j: rdk(1, j), ["s_nop 7"] + sm_a(0, False), {}, 0)
    a("s_branch L_at_loop")
    for r in rare:
        a.l.append(r)
    a.lab("L_at_tail")
    a("s_waitcnt lgkmcnt(0)")
    for j in range(8):
        rdv(1, j)
    for o in sm_b(1):
        a(o)
    a("s_waitcnt lgkmcnt(0)")
    a("s_nop 1")
    for j in range(8):
        mmv(1, j)
    stamp(a, 3)
    a("s_nop 7")
    a("s_nop 3")
    l = vLp
    a(f"v_add_f32 v{l}, v{l}, v{l+1}")
    a(f"v_mov_b32 v{vT+1}, v{l}")
    a("s_nop 1")
    a(f"v_permlane32_swap_b32 v{l}, v{vT+1}")
    a("s_nop 1")
    a(f"v_add_f32 v{l}, v{l}, v{vT+1}")
    a(f"v_rcp_f32 v{l}, v{l}")
    a("s_nop 0")
    a(f"s_mov_b32 s{sT1}, 7168")
    a(f"s_mov_b32 s{sT2}, 14336")
    a(f"s_mov_b32 s{sT3}, 21504")
    for T in range(4):
        for s_ in range(2):
            o = FR + (T * 2 + s_) * 4
            x = acc(T) + s_ * 8
            for r in range(8):
                a(f"v_mul_f32 v{x+r}, v{x+r}, v{l}")
            for j in range(4):
                a(f"v_cvt_pk_bf16_f32 v{o+j}, v{x+2*j}, v{x+2*j+1}")
            so = "0" if T == 0 else f"s{sT0+T}"
            a(f"buffer_store_dwordx4 {vr(o,4)}, v{vOst}, {sr(sO,4)}, {so} offen offset:{s_*512} {os.environ.get('OSF','')}")
    a.lab("L_attn_fin")
    if DIAG:
        a("s_waitcnt vmcnt(0)")
        stamp(a, 4)
        diag_dump(a, 52, sW, 128 << 20, 3)
    a.lab("L_attn_end")
    a("s_endpgm")

def gen_oproj(a):
    NST = OP_DEPTH
    assert 32 % NST == 0
    sW = 3
    sOo, sWO, sOUT = 20, 24, 28
    sKo, sKw = 32, 33
    sPo, sPw = 34, 35
    sCnt = 36
    sBig = 39
    sRing = 40
    vLane = 1
    vO0, vO1 = 2, 3
    vWd = 4
    vRd = 8
    g, c = 12, 13
    vT = 14
    ST = 32
    AF = ST + NST * 28
    def of(st, nt): return ST + st * 28 + nt * 4
    def acc(i, nt): return (nt * 4 + i) * 4
    RING = NST * 4096

    a.lab("oproj_kernel")
    a("s_cmp_ge_u32 s2, 256")
    a("s_cbranch_scc1 L_op_end")
    stamp(a, 0)
    if DIAG: a("s_memrealtime s[78:79]")
    a("s_and_b32 s4, s2, 7")
    a("s_lshr_b32 s5, s2, 3")
    a("s_lshr_b32 s6, s4, 2")
    a("s_bfe_u32 s7, s4, 0x10001")
    a("s_lshl_b32 s7, s7, 2")
    a("s_and_b32 s8, s5, 3")
    a("s_add_u32 s7, s7, s8")
    a("s_and_b32 s8, s4, 1")
    a("s_lshl_b32 s8, s8, 3")
    a("s_lshr_b32 s9, s5, 2")
    a("s_add_u32 s8, s8, s9")
    a("s_mul_i32 s9, s6, 40")
    a("s_add_u32 s10, s0, s9")
    a("s_addc_u32 s11, s1, 0")
    a("s_load_dwordx2 s[12:13], s[10:11], 32")
    a("s_load_dwordx2 s[14:15], s[0:1], 80")
    a("s_load_dwordx2 s[16:17], s[0:1], 96")
    a(f"v_and_b32 v{vLane}, 63, v0")
    a("v_lshrrev_b32 v8, 6, v0")
    a("s_nop 0")
    a(f"v_readfirstlane_b32 s{sW}, v8")
    a(f"s_mov_b32 s{sBig}, 0x7f000000")
    a(f"v_lshrrev_b32 v{g}, 4, v{vLane}")
    a(f"v_and_b32 v{c}, 15, v{vLane}")
    a(f"v_lshlrev_b32 v{vO0}, 4, v{vLane}")
    a(f"v_add_u32 v{vO1}, 4096, v{vO0}")
    a(f"s_mul_i32 s{sRing}, s{sW}, {RING}")
    t0, t1, t2 = 20, 21, 22
    a(f"v_lshrrev_b32 v{t0}, 3, v{vLane}")
    a(f"v_bfe_u32 v{t1}, v{vLane}, 4, 2")
    a(f"v_lshlrev_b32 v{t1}, 1, v{t1}")
    a(f"v_and_b32 v{t2}, 7, v{vLane}")
    a(f"v_xor_b32 v{t1}, v{t1}, v{t2}")
    a(f"v_lshlrev_b32 v{t1}, 4, v{t1}")
    a(f"v_lshl_add_u32 v{vWd}, v{t0}, 11, v{t1}")
    for i in range(1, 4):
        a(f"v_add_u32 v{vWd+i}, {i*(8*2048-1024)}, v{vWd}")
    rp, cp = 23, 24
    a(f"v_bfe_u32 v{rp}, v{vLane}, 2, 2")
    a(f"v_and_b32 v{cp}, 3, v{vLane}")
    a(f"v_and_b32 v{t0}, 1, v{g}")
    a(f"v_lshlrev_b32 v{t0}, 1, v{t0}")
    a(f"v_lshrrev_b32 v{t1}, 1, v{rp}")
    a(f"v_add_u32 v{t0}, v{t0}, v{t1}")
    a(f"v_lshlrev_b32 v{t0}, 1, v{t0}")
    a(f"v_lshrrev_b32 v{t1}, 1, v{cp}")
    a(f"v_xor_b32 v{t0}, v{t0}, v{t1}")
    a(f"v_lshlrev_b32 v{t0}, 4, v{t0}")
    a(f"v_and_b32 v{t1}, 1, v{cp}")
    a(f"v_lshl_or_b32 v{t0}, v{t1}, 3, v{t0}")
    a(f"v_and_b32 v{t1}, 1, v{g}")
    a(f"v_lshl_add_u32 v{t1}, v{t1}, 2, v{rp}")
    a(f"v_lshrrev_b32 v{t2}, 1, v{g}")
    a(f"v_lshl_add_u32 v{t1}, v{t2}, 4, v{t1}")
    a(f"v_lshl_add_u32 v{t0}, v{t1}, 7, v{t0}")
    a(f"v_add_u32 v{vRd}, s{sRing}, v{t0}")
    for i in range(1, 4):
        a(f"v_xor_b32 v{vRd+i}, {i<<5}, v{vRd}")
    a("s_waitcnt lgkmcnt(0)")
    a("s_lshl_b32 s9, s6, 3")
    a("s_add_u32 s9, s9, s7")
    a("s_mul_i32 s9, s9, 917504")
    a(f"s_add_u32 s{sOo}, s16, s9")
    a(f"s_addc_u32 s{sOo+1}, s17, 0")
    a(f"s_mov_b32 s{sOo+2}, 917504")
    a(f"s_mov_b32 s{sOo+3}, 0x00020000")
    a("s_lshl_b32 s9, s8, 7")
    a(f"s_add_u32 s{sWO}, s12, s9")
    a(f"s_addc_u32 s{sWO+1}, s13, 0")
    a(f"s_sub_u32 s{sWO+2}, 8388608, s9")
    a(f"s_mov_b32 s{sWO+3}, 0x00020000")
    a("s_mul_i32 s10, s7, 458752")
    a("s_lshl_b32 s11, s6, 11")
    a("s_add_u32 s10, s10, s11")
    a("s_add_u32 s10, s10, s9")
    a(f"s_add_u32 s{sOUT}, s14, s10")
    a(f"s_addc_u32 s{sOUT+1}, s15, 0")
    a(f"s_mov_b32 s{sOUT+2}, {111*4096+128}")
    a(f"s_mov_b32 s{sOUT+3}, 0x00020000")
    OROT = int(os.environ.get("OROT", "0"))
    sBo, sBw, sStep = 41, 42, 43
    a(f"s_mul_i32 s{sBo}, s{sW}, {32*7168}")
    a(f"s_lshl_b32 s{sBw}, s{sW}, 21")
    a(f"s_and_b32 s{sStep}, s7, 3")
    a(f"s_mul_i32 s{sStep}, s{sStep}, {OROT}")
    def set_off():
        a(f"s_and_b32 s{sStep}, s{sStep}, 31")
        a(f"s_mul_i32 s{sKo}, s{sStep}, 7168")
        a(f"s_add_u32 s{sKo}, s{sKo}, s{sBo}")
        a(f"s_lshl_b32 s{sKw}, s{sStep}, 16")
        a(f"s_add_u32 s{sKw}, s{sKw}, s{sBw}")
        a(f"s_add_u32 s{sStep}, s{sStep}, 1")
    set_off()

    def ld_wo(st, so):
        a(f"s_add_u32 m0, s{sRing}, {st*4096}")
        a("s_nop 0")
        for i in range(4):
            a(f"buffer_load_dwordx4 v{vWd+i}, {sr(sWO,4)}, s{so} offen offset:{i*1024} {os.environ.get('OPF','')} lds")
    def ld_o(st, so):
        for nt in range(7):
            v = vO0 if nt < 4 else vO1
            a(f"buffer_load_dwordx4 {vr(of(st,nt),4)}, v{v}, {sr(sOo,4)}, s{so} offen offset:{(nt&3)*1024} {os.environ.get('OLF','')}")
    def rd_af(st, buf):
        for i in range(4):
            for hh in range(2):
                a(f"ds_read_b64_tr_b16 {vr(AF+buf*16+i*4+hh*2,2)}, v{vRd+i} offset:{st*4096+hh*1024}")
    for st in range(NST):
        ld_wo(st, sKw)
        ld_o(st, sKo)
        set_off()
    for i in range(112):
        a(f"v_accvgpr_write_b32 a{i}, 0")
    stamp(a, 1)
    a(f"s_waitcnt vmcnt({(NST-1)*11+7})")
    rd_af(0, 0)
    a(f"s_mov_b32 s{sCnt}, 0")
    a.lab("L_op_loop")
    for st in range(NST):
        buf = st & 1
        nst = (st + 1) % NST
        a(f"s_cmp_lt_u32 s{sCnt}, {32//NST - 1}")
        a(f"s_cselect_b32 s{sPw}, s{sKw}, s{sBig}")
        a(f"s_cselect_b32 s{sPo}, s{sKo}, s{sBig}")
        a(f"s_waitcnt vmcnt({7+(NST-2)*11}) lgkmcnt(0)")
        ld_wo(st, sPw)
        rd_af(nst, buf ^ 1)
        for nt in range(7):
            for i in range(4):
                a(f"v_mfma_f32_16x16x32_bf16 {ar(acc(i,nt),4)}, {vr(AF+buf*16+i*4,4)}, {vr(of(st,nt),4)}, {ar(acc(i,nt),4)}")
        ld_o(st, sPo)
        set_off()
    a(f"s_add_u32 s{sCnt}, s{sCnt}, 1")
    a(f"s_cmp_lt_u32 s{sCnt}, {32//NST}")
    a("s_cbranch_scc1 L_op_loop")
    stamp(a, 2)
    a("s_waitcnt vmcnt(0) lgkmcnt(0)")
    a("s_barrier")
    a(f"v_add_u32 v{vT+3}, 57344, v{vO0}")
    for wv in range(4):
        a(f"s_cmp_lg_u32 s{sW}, {wv}")
        a(f"s_cbranch_scc1 L_epw{wv}")
        for i in range(4):
            if i == wv: continue
            slot = (wv - i - 1) & 3
            base = i * 21504 + slot * 7168
            vb, off = (vO0, base) if base + 6144 < 65536 else (vT + 3, base - 57344)
            if i == 3 or (i == 2):
                pass
            for nt in range(7):
                o_ = base + nt * 1024
                if o_ < 65536:
                    a(f"ds_write_b128 v{vO0}, {ar(acc(i,nt),4)} offset:{o_}")
                else:
                    a(f"ds_write_b128 v{vT+3}, {ar(acc(i,nt),4)} offset:{o_-57344}")
        for nt in range(7):
            for r in range(4):
                a(f"v_accvgpr_read_b32 v{32+nt*4+r}, a{acc(wv,nt)+r}")
        a.lab(f"L_epw{wv}")
    a("s_waitcnt lgkmcnt(0)")
    a("s_barrier")
    a(f"s_mul_i32 s4, s{sW}, 21504")
    a(f"v_add_u32 v{vT}, s4, v{vO0}")
    a(f"v_lshlrev_b32 v{vT+2}, 12, v{c}")
    a(f"v_lshl_add_u32 v{vT+2}, v{g}, 3, v{vT+2}")
    a(f"s_lshl_b32 s4, s{sW}, 5")
    a(f"v_add_u32 v{vT+2}, s4, v{vT+2}")
    R = 64
    for nt in range(7):
        for sl in range(3):
            a(f"ds_read_b128 {vr(R+(nt*3+sl)*4,4)}, v{vT} offset:{sl*7168+nt*1024}")
    for nt in range(7):
        a(f"s_waitcnt lgkmcnt({min(15, (6-nt)*3)})")
        for r in range(4):
            x = 32 + nt * 4 + r
            b0 = R + nt * 12 + r
            a(f"v_add_f32 v{b0}, v{b0}, v{b0+4}")
            a(f"v_add_f32 v{x}, v{x}, v{b0+8}")
            a(f"v_add_f32 v{x}, v{x}, v{b0}")
        x = 32 + nt * 4
        O = 160 + nt * 2
        a(f"v_cvt_pk_bf16_f32 v{O}, v{x}, v{x+1}")
        a(f"v_cvt_pk_bf16_f32 v{O+1}, v{x+2}, v{x+3}")
        a(f"s_mov_b32 s5, {nt*65536}")
        a(f"buffer_store_dwordx2 {vr(O,2)}, v{vT+2}, {sr(sOUT,4)}, s5 offen {os.environ.get('OUTF','')}")
    a.lab("L_op_fin")
    if DIAG:
        a("s_waitcnt vmcnt(0)")
        stamp(a, 3)
        diag_dump(a, 16, sW, 129 << 20)
    a.lab("L_op_end")
    a("s_endpgm")
    return AF + 32


HEADER = open("cdna_kernels/" + NAME + ".s.ref").read().split("; Override launch")[0]

def kd(name, vgpr, accum, sgpr=102):
    return f""".amdhsa_kernel {name}
  .amdhsa_next_free_vgpr {vgpr}
  .amdhsa_next_free_sgpr {sgpr}
  .amdhsa_accum_offset {accum}
  .amdhsa_group_segment_fixed_size 0
  .amdhsa_kernarg_size 104
  .amdhsa_user_sgpr_count 2
  .amdhsa_user_sgpr_kernarg_segment_ptr 1
  .amdhsa_system_sgpr_workgroup_id_x 1
.end_amdhsa_kernel
"""

def main():
    out = HEADER
    out += "; @launch kernel=attn_kernel grid=(256,1,1) block=(512,1,1) lds=163840\n"
    out += "; @launch kernel=oproj_kernel grid=(256,1,1) block=(256,1,1) lds=114688\n"
    out += '.amdgcn_target "amdgcn-amd-amdhsa--gfx950"\n.text\n'
    for name, fn in (("attn_kernel", gen_attn), ("oproj_kernel", gen_oproj)):
        a = A()
        fn(a)
        out += f".globl {name}\n.p2align 8\n.type {name},@function\n" + a.text()
    out += '.section .rodata,"a"\n.p2align 6\n'
    out += kd("attn_kernel", 256, 256)
    out += ".p2align 6\n"
    out += kd("oproj_kernel", 368, 256)
    path = sys.argv[1] if len(sys.argv) > 1 else "cdna_kernels/" + NAME + ".s"
    open(path, "w").write(out)

if __name__ == "__main__":
    main()
```

```python
import sys, os, struct
DIAG = int(os.environ.get("DIAG", "0"))
NAME = "concat_heads__mha_block_cached__mha_block_cached__near_ridge"
PF_WQ = int(os.environ.get("PF_WQ", "1"))
PF_WO = int(os.environ.get("PF_WO", "1"))
OP_DEPTH = int(os.environ.get("OP_DEPTH", "4"))
PRIO = int(os.environ.get("PRIO", "1"))

class A:
    def __init__(self):
        self.l = []
    def __call__(self, s):
        self.l.append("    " + s)
    def lab(self, s):
        self.l.append(s + ":")
    def text(self):
        return "\n".join(self.l) + "\n"

def vr(a, n):
    return f"v[{a}:{a+n-1}]" if n > 1 else f"v{a}"
def ar(a, n):
    return f"a[{a}:{a+n-1}]" if n > 1 else f"a{a}"
def sr(a, n):
    return f"s[{a}:{a+n-1}]" if n > 1 else f"s{a}"

SCALE_C = 0.08838834764831845 * 1.4426950408889634
def f32bits(x):
    return struct.unpack("<I", struct.pack("<f", x))[0]

def stamp(a, i):
    if DIAG:
        a("s_waitcnt lgkmcnt(0)")
        a(f"s_mem{'real' if DIAG == 2 else ''}time s[{60+2*i}:{61+2*i}]")
        a("s_waitcnt lgkmcnt(0)")
def diag_dump(a, wsreg, sW, region, lg=2):
    if not DIAG: return
    if DIAG == 2:
        u = region
        a(f"s_cmp_lg_u32 s{sW}, 0")
        a(f"s_cbranch_scc1 L_dd{u}")
        if lg == 3:
            a("s_and_b32 s84, s2, 63")
            a("s_lshr_b32 s85, s2, 6")
            a("s_cmp_lg_u32 s84, s85")
            a(f"s_cbranch_scc1 L_dd{u}")
            a(f"s_add_u32 s88, s{wsreg}, {200<<20}")
            a(f"s_addc_u32 s89, s{wsreg+1}, 0")
            a("s_mov_b32 s90, 256")
            a("s_mov_b32 s91, 0x00020000")
            a("s_lshl_b32 s84, s85, 4")
            a("v_mov_b32 v1, s84")
            for i in range(4):
                a(f"s_sub_u32 s85, s{62+2*i}, s{60+2*i}")
                a("v_mov_b32 v2, s85")
                a(f"buffer_store_dword v2, v1, s[88:91], 0 offen offset:{i*4}")
                a("s_waitcnt vmcnt(0)")
        else:
            a("s_cmp_lg_u32 s2, 0")
            a(f"s_cbranch_scc1 L_dd{u}")
            a(f"s_add_u32 s88, s{wsreg}, {200<<20}")
            a(f"s_addc_u32 s89, s{wsreg+1}, 0")
            a("s_mov_b32 s90, 64")
            a("s_mov_b32 s91, 0x00020000")
            a("s_load_dwordx2 s[84:85], s[0:1], 88")
            a("v_and_b32 v1, 63, v0")
            a("v_lshlrev_b32 v1, 2, v1")
            a("buffer_load_dword v2, v1, s[88:91], 0 offen")
            a("s_waitcnt vmcnt(0) lgkmcnt(0)")
            a("s_mov_b32 s86, 64")
            a("s_mov_b32 s87, 0x00020000")
            a("buffer_store_dword v2, v1, s[84:87], 0 offen")
            a("s_waitcnt vmcnt(0)")
        a.lab(f"L_dd{u}")
        return
    a("s_memrealtime s[80:81]")
    a("s_getreg_b32 s82, hwreg(HW_REG_HW_ID)")
    a("s_getreg_b32 s83, hwreg(HW_REG_XCC_ID)")
    a("s_waitcnt lgkmcnt(0)")
    a(f"s_lshl_b32 s84, s2, {lg}")
    a(f"s_add_u32 s84, s84, s{sW}")
    a(f"s_lshl_b32 s84, s84, 7")
    a(f"s_add_u32 s84, s84, {region}")
    a(f"s_add_u32 s88, s{wsreg}, s84")
    a(f"s_addc_u32 s89, s{wsreg+1}, 0")
    a("s_mov_b32 s90, 128")
    a("s_mov_b32 s91, 0x00020000")
    a("v_mov_b32 v1, 0")
    for i in range(24):
        a(f"v_mov_b32 v2, s{60+i}")
        a(f"buffer_store_dword v2, v1, s[88:91], 0 offen offset:{i*4}")
        a("s_waitcnt vmcnt(0)")

class VM:
    def __init__(self):
        self.ops = []
    def issue(self, tag, n):
        self.ops += [tag] * n
    def need(self, *tags):
        last = max(i for i, t in enumerate(self.ops) if t in tags)
        for t in tags:
            assert t in self.ops, t
        return len(self.ops) - 1 - last

KVF = os.environ.get("KVF", "")
WQF = os.environ.get("WQF", "")
KV_START = int(os.environ.get("KV_START", "20"))

def gen_attn(a):
    PK = int(os.environ.get("PK", "1"))
    STAG = int(os.environ.get("STAG", "0"))
    sW = 3
    sWq = 99
    sE = 96
    sX, sWQ, sK, sV, sO, sWO = 20, 24, 28, 32, 36, 56
    sSlotR, sSlotW = 40, 41
    sM0kv = 42
    sWQoff = 43
    sXoff = 44
    sKVoff = 45
    sCnt = 46
    sC = 47
    sT0, sT1, sT2, sT3 = 48, 49, 50, 51
    sM0q = 92
    sM0x = 93
    vLane = 1
    vWQd = 2
    vXd = 4
    vKd = 6
    vVd = 10
    vA0k, vA0v = 11, 12
    vOst = 13
    vAd = 14
    vAv = 22
    vM = 26
    vLp = 28
    vT = 30
    vPFd = 44
    vP = 48
    ACC = 64
    FR = 128
    QF = 192
    SS = 224
    QB = [128, 160]
    XB = [192, 208]
    WQ0, X0 = 65536, 131072
    MF = "v_mfma_f32_32x32x16_bf16"

    def acc(T): return ACC + T * 16
    def ss(t): return SS + t * 16
    def pf(t, s_): return vP + (t * 2 + s_) * 4

    a.lab("attn_kernel")
    a("s_cmp_ge_u32 s2, 256")
    a("s_cbranch_scc1 L_attn_end")
    stamp(a, 0)
    if DIAG: a("s_memrealtime s[78:79]")
    a("s_and_b32 s4, s2, 7")
    a("s_lshr_b32 s5, s2, 3")
    a("s_lshr_b32 s6, s4, 2")
    a("s_and_b32 s7, s4, 3")
    a("s_lshl_b32 s7, s7, 2")
    a("s_and_b32 s8, s5, 3")
    a("s_add_u32 s7, s7, s8")
    a("s_lshr_b32 s8, s5, 2")
    a("s_mul_i32 s9, s6, 40")
    a("s_add_u32 s10, s0, s9")
    a("s_addc_u32 s11, s1, 0")
    a("s_load_dwordx8 s[12:19], s[10:11], 0")
    a("s_load_dwordx2 s[94:95], s[10:11], 32")
    a("s_load_dwordx2 s[52:53], s[0:1], 96")
    a(f"v_and_b32 v{vLane}, 63, v0")
    a("v_lshrrev_b32 v2, 6, v0")
    a("s_nop 0")
    a(f"v_readfirstlane_b32 s{sW}, v2")
    a(f"s_mov_b32 s{sC}, 0x{f32bits(SCALE_C):08x}")
    a(f"s_mov_b32 s100, 0x{f32bits(SCALE_C):08x}")
    a(f"s_mov_b32 s101, 0x{f32bits(SCALE_C):08x}")
    g, c, rp, cp, hh_, m_ = 36, 37, 38, 39, 42, 43
    t0, t1 = 40, 41
    a(f"v_lshrrev_b32 v{g}, 4, v{vLane}")
    a(f"v_and_b32 v{c}, 15, v{vLane}")
    a(f"v_bfe_u32 v{rp}, v{vLane}, 2, 2")
    a(f"v_and_b32 v{cp}, 3, v{vLane}")
    a(f"v_lshrrev_b32 v{hh_}, 5, v{vLane}")
    a(f"v_and_b32 v{m_}, 31, v{vLane}")
    a(f"s_and_b32 s{sWq}, s{sW}, 3")
    a(f"s_lshr_b32 s{sE}, s{sW}, 2")
    a(f"s_lshl_b32 s{sM0kv}, s{sW}, 12")
    a(f"s_lshl_b32 s{sM0q}, s{sW}, 11")
    a(f"s_add_u32 s{sM0x}, s{sM0q}, {X0}")
    a(f"s_add_u32 s{sM0q}, s{sM0q}, {WQ0}")
    a(f"v_lshlrev_b32 v{t1}, 2, v{hh_}")
    a(f"v_xor_b32 v{t1}, v{t1}, v{c}")
    a(f"v_lshlrev_b32 v{t1}, 4, v{t1}")
    a(f"v_lshl_add_u32 v{t1}, v{hh_}, 13, v{t1}")
    a(f"v_and_b32 v{t0}, 1, v{g}")
    a(f"v_lshl_add_u32 v{t1}, v{t0}, 8, v{t1}")
    a(f"s_lshl_b32 s{sT0}, s{sW}, 15")
    a(f"v_add_u32 v{vWQd}, s{sT0}, v{t1}")
    a(f"v_xor_b32 v{t1}, 128, v{vWQd}")
    a(f"v_add_u32 v{vWQd+1}, {2*8192-1024}, v{t1}")
    a(f"v_and_b32 v{t1}, 7, v{vLane}")
    a(f"v_xor_b32 v{t0}, v{g}, v{t1}")
    a(f"v_lshlrev_b32 v{t0}, 4, v{t0}")
    a(f"v_lshrrev_b32 v{t1}, 3, v{vLane}")
    a(f"v_lshl_add_u32 v{t0}, v{t1}, 11, v{t0}")
    a(f"v_add_u32 v{vXd}, s{sT0}, v{t0}")
    a(f"v_xor_b32 v{t0}, 64, v{vXd}")
    a(f"v_add_u32 v{vXd+1}, {8*2048-1024}, v{t0}")
    a("s_waitcnt lgkmcnt(0)")
    a("s_mul_i32 s9, s8, 229376")
    a(f"s_add_u32 s{sX}, s12, s9")
    a(f"s_addc_u32 s{sX+1}, s13, 0")
    a(f"s_mov_b32 s{sX+2}, 229376")
    a(f"s_mov_b32 s{sX+3}, 0x00020000")
    a("s_lshl_b32 s9, s7, 9")
    a(f"s_add_u32 s{sWQ}, s18, s9")
    a(f"s_addc_u32 s{sWQ+1}, s19, 0")
    a(f"s_sub_u32 s{sWQ+2}, 8388608, s9")
    a(f"s_mov_b32 s{sWQ+3}, 0x00020000")
    a(f"s_mov_b32 s{sWQoff}, 0")
    a(f"s_mov_b32 s{sXoff}, 0")

    vm = VM()
    XF = os.environ.get("XF", "")
    def wq_pieces(cn):
        q = cn & 3
        def p0():
            a(f"s_add_u32 m0, s{sM0q}, {q*16384}")
            a("s_nop 0")
            a(f"buffer_load_dwordx4 v{vWQd}, {sr(sWQ,4)}, s{sWQoff} offen {WQF} lds")
            vm.issue(("wq", cn), 1)
        def p1():
            a(f"s_add_u32 m0, s{sM0q}, {q*16384}")
            a("s_nop 0")
            a(f"buffer_load_dwordx4 v{vWQd+1}, {sr(sWQ,4)}, s{sWQoff} offen offset:1024 {WQF} lds")
            if not os.environ.get("NOADV"): a(f"s_add_u32 s{sWQoff}, s{sWQoff}, {32*8192}")
            vm.issue(("wq", cn), 1)
        return [p0, p1]
    def x_pieces(m):
        q = m & 1
        def p0():
            a(f"s_add_u32 m0, s{sM0x}, {q*16384}")
            a("s_nop 0")
            a(f"buffer_load_dwordx4 v{vXd}, {sr(sX,4)}, s{sXoff} offen {XF} lds")
            vm.issue(("x", m), 1)
        def p1():
            a(f"s_add_u32 m0, s{sM0x}, {q*16384}")
            a("s_nop 0")
            a(f"buffer_load_dwordx4 v{vXd+1}, {sr(sX,4)}, s{sXoff} offen offset:1024 {XF} lds")
            if not os.environ.get("NOADV"): a(f"s_add_u32 s{sXoff}, s{sXoff}, 128")
            vm.issue(("x", m), 1)
        return [p0, p1]
    def kv_voff(isK, i):
        return vKd + i if isK else vVd
    def kv_pieces(n):
        isK = n % 2 == 0
        srd = sK if isK else sV
        out = []
        for i in range(4):
            def p(i=i):
                a(f"s_add_u32 m0, s{sM0kv}, {n*32768}")
                a(f"s_mov_b32 s{sT0}, {(n>>1)*16384}")
                a(f"buffer_load_dwordx4 v{kv_voff(isK,i)}, {sr(srd,4)}, s{sT0} offen offset:{i*1024} {KVF} lds")
                vm.issue(("kv", n), 1)
            out.append(p)
        return out

    for p in x_pieces(0) + wq_pieces(0) + wq_pieces(1) + x_pieces(1) + wq_pieces(2) + wq_pieces(3):
        p()

    a(f"v_bfe_u32 v{t0}, v{m_}, 1, 3")
    a(f"v_xor_b32 v{t0}, v{t0}, v{hh_}")
    a(f"v_lshlrev_b32 v{t0}, 4, v{t0}")
    a(f"v_lshl_add_u32 v{t0}, v{m_}, 7, v{t0}")
    a(f"s_lshl_b32 s{sT0}, s{sWq}, 12")
    a(f"s_add_u32 s{sT0}, s{sT0}, {X0}")
    a(f"v_add_u32 v{vAd+4}, s{sT0}, v{t0}")
    for k in range(1, 4):
        a(f"v_xor_b32 v{vAd+4+k}, {k<<5}, v{vAd+4}")
    a(f"v_and_b32 v{t0}, 1, v{g}")
    a(f"v_and_b32 v{t1}, 1, v{cp}")
    a(f"v_lshl_or_b32 v{t0}, v{t0}, 1, v{t1}")
    a(f"v_lshl_or_b32 v{t0}, v{rp}, 2, v{t0}")
    a(f"v_lshlrev_b32 v{t0}, 4, v{t0}")
    a(f"v_lshrrev_b32 v{t1}, 1, v{cp}")
    a(f"v_lshl_or_b32 v{t0}, v{t1}, 3, v{t0}")
    a(f"v_lshl_add_u32 v{t1}, v{hh_}, 3, v{rp}")
    a(f"v_lshl_add_u32 v{t0}, v{t1}, 9, v{t0}")
    a(f"s_lshl_b32 s{sT0}, s{sE}, 8")
    a(f"s_add_u32 s{sT0}, s{sT0}, {WQ0}")
    a(f"v_add_u32 v{vAd}, s{sT0}, v{t0}")
    for k in range(1, 4):
        a(f"v_xor_b32 v{vAd+k}, {k<<6}, v{vAd}")
    a(f"s_lshl_b32 s{sT0}, s{sWq}, 12")
    a(f"v_xor_b32 v{t0}, v{g}, v{c}")
    a(f"v_lshlrev_b32 v{t0}, 4, v{t0}")
    a(f"v_lshl_add_u32 v{t0}, v{g}, 8, v{t0}")
    a(f"v_add_u32 v{vKd}, s{sT0}, v{t0}")
    for i in range(1, 4):
        a(f"v_xor_b32 v{vKd+i}, {i<<6}, v{vKd}")
    a(f"v_lshlrev_b32 v{t0}, 2, v{g}")
    a(f"v_xor_b32 v{t0}, v{t0}, v{c}")
    a(f"v_lshlrev_b32 v{t0}, 4, v{t0}")
    a(f"v_lshl_add_u32 v{t0}, v{g}, 8, v{t0}")
    a(f"v_add_u32 v{vVd}, s{sT0}, v{t0}")
    a(f"s_lshl_b32 s{sT1}, s{sE}, 14")
    a(f"v_xor_b32 v{t0}, v{hh_}, v{c}")
    a(f"v_lshlrev_b32 v{t0}, 4, v{t0}")
    a(f"v_lshl_add_u32 v{t0}, v{m_}, 8, v{t0}")
    a(f"v_add_u32 v{vA0k}, s{sT1}, v{t0}")
    a(f"v_and_b32 v{t0}, 1, v{g}")
    a(f"v_lshrrev_b32 v{t1}, 1, v{cp}")
    a(f"v_lshl_or_b32 v{t0}, v{t0}, 1, v{t1}")
    a(f"v_lshl_or_b32 v{t0}, v{rp}, 2, v{t0}")
    a(f"v_lshlrev_b32 v{t0}, 4, v{t0}")
    a(f"v_and_b32 v{t1}, 1, v{cp}")
    a(f"v_lshl_or_b32 v{t0}, v{t1}, 3, v{t0}")
    a(f"v_lshl_add_u32 v{t1}, v{hh_}, 2, v{rp}")
    a(f"v_lshl_add_u32 v{t0}, v{t1}, 8, v{t0}")
    a(f"v_add_u32 v{vA0v}, s{sT1}, v{t0}")
    a(f"v_and_b32 v{t0}, 1, v{g}")
    a(f"v_lshlrev_b32 v{t0}, 10, v{t0}")
    a(f"v_lshl_add_u32 v{t0}, v{hh_}, 8, v{t0}")
    a(f"v_lshl_add_u32 v{t0}, v{c}, 4, v{t0}")
    a(f"s_lshl_b32 s{sT0}, s{sWq}, 11")
    a(f"v_add_u32 v{t0}, s{sT0}, v{t0}")
    a(f"v_mov_b32 v{t1}, 0x40000000")
    a(f"v_cmp_gt_u32 vcc, 7168, v{t0}")
    a("s_nop 1")
    a(f"v_cndmask_b32 v{vOst}, v{t1}, v{t0}, vcc")
    a(f"v_lshlrev_b32 v27, 4, v{vLane}")
    a("s_lshl_b32 s7, s7, 1")
    a(f"s_add_u32 s7, s7, s{sE}")
    a("s_lshl_b32 s9, s8, 5")
    a("s_add_u32 s9, s9, s7")
    a("s_lshl_b32 s10, s9, 15")
    a("s_lshl_b32 s9, s9, 17")
    a(f"s_add_u32 s{sK}, s14, s9")
    a(f"s_addc_u32 s{sK+1}, s15, 0")
    a(f"s_mov_b32 s{sK+2}, 131072")
    a(f"s_mov_b32 s{sK+3}, 0x00020000")
    a(f"s_add_u32 s{sV}, s16, s9")
    a(f"s_addc_u32 s{sV+1}, s17, 0")
    a(f"s_mov_b32 s{sV+2}, 131072")
    a(f"s_mov_b32 s{sV+3}, 0x00020000")
    if PF_WO == 2:
        OPD = int(os.environ.get("OPD", "8"))
        RPW = OPD // 8
        a("s_lshr_b32 s10, s10, 13")
        a(f"s_add_u32 s10, s10, s{sWq}")
        a("s_lshr_b32 s11, s10, 8")
        a("s_and_b32 s10, s10, 255")
        a(f"s_mul_i32 s10, s10, {RPW*2048}")
        a("s_lshl_b32 s11, s11, 21")
        a("s_add_u32 s10, s10, s11")
        a(f"s_add_u32 s{sWO}, s94, s10")
        a(f"s_addc_u32 s{sWO+1}, s95, 0")
        a(f"s_mov_b32 s{sWO+2}, {RPW*2048}")
        a(f"s_mov_b32 s{sWO+3}, 0x00020000")
    else:
        a(f"s_add_u32 s{sWO}, s94, s10")
        a(f"s_addc_u32 s{sWO+1}, s95, 0")
        a(f"s_mov_b32 s{sWO+2}, 32768")
        a(f"s_mov_b32 s{sWO+3}, 0x00020000")
    a("s_lshl_b32 s9, s6, 3")
    a("s_add_u32 s9, s9, s8")
    a("s_lshl_b32 s9, s9, 7")
    a("s_lshl_b32 s10, s7, 2")
    a("s_add_u32 s9, s9, s10")
    a("s_mul_i32 s9, s9, 7168")
    a(f"s_add_u32 s{sO}, s52, s9")
    a(f"s_addc_u32 s{sO+1}, s53, 0")
    a(f"s_mov_b32 s{sO+2}, 28672")
    a(f"s_mov_b32 s{sO+3}, 0x00020000")
    a(f"s_mov_b32 s{sSlotR}, 0")
    a(f"s_mov_b32 s{sSlotW}, 131072")
    a(f"s_mov_b32 s{sKVoff}, 32768")
    for i in range(64):
        a(f"v_mov_b32 v{ACC+i}, 0")

    def q_rd_x(m):
        xb = m & 1
        for k in range(4):
            a(f"ds_read_b128 {vr(XB[xb]+k*4,4)}, v{vAd+4+k} offset:{(m&1)*16384}")
    def q_rd(buf, f, q):
        ks, mt = f >> 2, f & 3
        for hh in range(2):
            a(f"ds_read_b64_tr_b16 {vr(QB[buf]+f*4+hh*2,2)}, v{vAd+mt} offset:{q*16384+ks*8192+hh*2048}")
    def q_mm(buf, f, xb, par):
        ks, mt = f >> 2, f & 3
        a(f"{MF} {vr(acc(mt),16)}, {vr(QB[buf]+f*4,4)}, {vr(XB[xb]+(par*2+ks)*4,4)}, {vr(acc(mt),16)}")

    stamp(a, 1)
    a(f"s_waitcnt vmcnt({vm.need(('x',0),('wq',0))})")
    a("s_barrier")
    q_rd_x(0)
    for f in range(8):
        q_rd(0, f, 0)

    kvq = kv_pieces(0) + kv_pieces(1)
    kv_sched = {}
    nit = 29 - KV_START
    for idx, p in enumerate(kvq):
        it = KV_START + (idx * nit) // len(kvq)
        kv_sched.setdefault(it, []).append(p)
    sPF = 98
    a(f"s_lshl_b32 s{sPF}, s{sWq}, 13" if PF_WO != 2 else f"s_mov_b32 s{sPF}, 0")
    def pf_piece():
        a(f"buffer_load_dword v26, v27, {sr(sWO,4)}, s{sPF} offen")
        a(f"s_add_u32 s{sPF}, s{sPF}, 1024")
        vm.issue("pf", 1)
    PFD = 24 if False else 26
    EARLYR = int(os.environ.get("EARLYR", "0"))
    BURST = int(os.environ.get("BURST", "0"))
    if EARLYR:
        EREG = {2: SS, 3: SS + 16}
        def kvr_pieces(n):
            isK = n % 2 == 0
            srd = sK if isK else sV
            out = []
            for i in range(4):
                def p(i=i):
                    a(f"s_mov_b32 s{sT0}, {(n>>1)*16384}")
                    a(f"buffer_load_dwordx4 {vr(EREG[n]+i*4,4)}, v{kv_voff(isK,i)}, {sr(srd,4)}, s{sT0} offen offset:{i*1024} {KVF}")
                    vm.issue(("kvr", n), 1)
                out.append(p)
            return out
        def wr_pieces(n):
            def p():
                a(f"s_waitcnt vmcnt({vm.need(('kvr', n))})")
                a(f"s_add_u32 s{sT0}, s{sM0kv}, {n*32768}")
                a(f"v_add_u32 v{vT}, s{sT0}, v27")
                for i in range(4):
                    a(f"ds_write_b128 v{vT}, {vr(EREG[n]+i*4,4)} offset:{i*1024}")
            return [p]
        kv_sched = {}
        kvq = kv_pieces(0) + kv_pieces(1) + kvr_pieces(2) + kvr_pieces(3)
        nit = 28 - KV_START
        for idx, p in enumerate(kvq):
            it = KV_START + (idx * nit) // len(kvq)
            kv_sched.setdefault(it, []).append(p)
        kv_sched.setdefault(29, []).extend(wr_pieces(2))
        kv_sched.setdefault(31, []).extend(wr_pieces(3))
    elif BURST:
        kv_sched = {}
        if BURST == 1:
            for idx, p in enumerate(kvq):
                it = KV_START + (idx * nit) // len(kvq)
                kv_sched.setdefault(it, []).append(p)
        kv_sched.setdefault(29, []).extend(kv_pieces(2))
        kv_sched.setdefault(31, []).extend(kv_pieces(3))
    else:
        if PF_WO: kv_sched.setdefault(29, []).append(pf_piece)
        kv_sched.setdefault(29, []).extend(kv_pieces(2))
        kv_sched.setdefault(31, []).extend(kv_pieces(3))
    sPhase, sRelax = 90, 91
    NB = 8 if BURST == 1 else 16
    if BURST:
        a("s_lshr_b32 s9, s2, 3")
        a("s_mul_i32 s10, s9, 52")
        a("s_lshr_b32 s10, s10, 8")
        a("s_mul_i32 s10, s10, 5")
        a(f"s_sub_u32 s{sPhase}, s9, s10")
        a(f"s_mov_b32 s{sRelax}, 0")

    def q_iter(cn):
        buf = cn & 1
        m = cn >> 1
        xb = m & 1
        has_next = cn < 31
        needs = []
        if has_next: needs.append(("wq", cn + 1))
        if cn % 2 == 1 and m + 1 <= 15: needs.append(("x", m + 1))
        w = vm.need(*needs) if needs else None
        if BURST and cn < KV_START:
            lid = f"{cn&3}"
            a(f"s_cmp_lg_u32 s{sRelax}, 0")
            a(f"s_cbranch_scc1 L_rlx{lid}")
            a(f"s_waitcnt vmcnt({w}) lgkmcnt(0)")
            a(f"s_branch L_go{lid}")
            a.lab(f"L_rlx{lid}")
            a(f"s_waitcnt vmcnt({w+NB}) lgkmcnt(0)")
            a(f"s_sub_u32 s{sRelax}, s{sRelax}, 1")
            a.lab(f"L_go{lid}")
        elif w is not None:
            a(f"s_waitcnt vmcnt({w}) lgkmcnt(0)")
        else:
            a("s_waitcnt lgkmcnt(0)")
        a("s_barrier")
        if BURST and cn < KV_START and (cn & 3) == 0:
            a(f"s_cmp_lg_u32 s{sCnt}, s{sPhase}")
            a("s_cbranch_scc1 L_noburst")
            sv = list(vm.ops)
            if BURST == 2:
                for p in kv_pieces(0) + kv_pieces(1): p()
            for i in range(8): pf_piece()
            vm.ops = sv
            a(f"s_mov_b32 s{sRelax}, 2")
            a.lab("L_noburst")
        pieces = []
        if cn % 2 == 0 and m + 2 <= 15: pieces += x_pieces(m + 2)
        if cn + 4 <= 31: pieces += wq_pieces(cn + 4)
        pieces += kv_sched.get(cn, [])
        slots = {}
        for i, p in enumerate(pieces):
            slots.setdefault((i * 8) // max(len(pieces), 1), []).append(p)
        rds = []
        if has_next:
            rds += [(lambda f=f: q_rd(buf ^ 1, f, (cn + 1) & 3)) for f in range(8)]
        if cn % 2 == 1 and m + 1 <= 15:
            rds.append(lambda: q_rd_x(m + 1))
        RPM = int(os.environ.get("RPM", "2"))
        for f in range(8):
            q_mm(buf, f, xb, cn & 1)
            for r_ in rds[f*RPM:(f+1)*RPM]:
                r_()
            for p in slots.get(f, []):
                p()
        return w

    ngrp = KV_START // 4
    a(f"s_mov_b32 s{sCnt}, 0")
    a.lab("L_qp_loop")
    ws0 = [q_iter(cn) for cn in range(4)]
    a(f"s_add_u32 s{sCnt}, s{sCnt}, 1")
    a(f"s_cmp_lt_u32 s{sCnt}, {ngrp}")
    a("s_cbranch_scc1 L_qp_loop")
    save = a.l
    for gI in range(1, ngrp):
        a.l = []
        wsg = [q_iter(gI * 4 + k) for k in range(4)]
        assert wsg == ws0, (wsg, ws0)
    a.l = save
    for cn in range(KV_START, 32):
        q_iter(cn)

    stamp(a, 2)
    a("s_nop 7")
    a("s_nop 3")
    NEGM = 32
    for mt in range(4):
        for s_ in range(2):
            q = QF + (mt * 2 + s_) * 4
            x = acc(mt) + s_ * 8
            for j in range(8):
                a(f"v_mul_f32 v{x+j}, s{sC}, v{x+j}")
            for j in range(4):
                a(f"v_cvt_pk_bf16_f32 v{q+j}, v{x+2*j}, v{x+2*j+1}")
    for i in range(64):
        a(f"v_mov_b32 v{ACC+i}, 0")
    for i in range(16):
        a(f"v_mov_b32 v{NEGM+i}, 0")
    a(f"v_mov_b32 v{vLp}, 0")
    a(f"v_mov_b32 v{vLp+1}, 0")
    sFirst = 97
    a(f"s_mov_b32 s{sFirst}, 1")

    def adv_slot(s):
        a(f"s_add_u32 s{s}, s{s}, 32768")
        a(f"s_cmp_ge_u32 s{s}, 163840")
        a(f"s_cselect_b32 s{s}, 0, s{s}")
    def dma_kv_pieces(isK):
        srd = sK if isK else sV
        out = []
        for i in range(4):
            def p(i=i):
                a(f"s_add_u32 m0, s{sSlotW}, s{sM0kv}")
                a("s_nop 0")
                if not os.environ.get("X_NODMA"): a(f"buffer_load_dwordx4 v{kv_voff(isK,i)}, {sr(srd,4)}, s{sKVoff} offen offset:{i*1024} {KVF} lds")
                if i == 3:
                    if not isK and not os.environ.get("NOADVKV"):
                        a(f"s_add_u32 s{sKVoff}, s{sKVoff}, 16384")
                    adv_slot(sSlotW)
            out.append(p)
        return out
    def k_addr():
        a(f"v_add_u32 v{vAd}, s{sSlotR}, v{vA0k}")
        for ks in range(1, 8):
            a(f"v_xor_b32 v{vAd+ks}, {ks<<5}, v{vAd}")
        adv_slot(sSlotR)
    def v_addr():
        a(f"v_add_u32 v{vAv}, s{sSlotR}, v{vA0v}")
        for T in range(1, 4):
            a(f"v_xor_b32 v{vAv+T}, {T<<6}, v{vAv}")
        adv_slot(sSlotR)
    XR_, YR_ = FR, FR + 32
    def rdk(t, ks):
        if not os.environ.get("X_NOLDS"): a(f"ds_read_b128 {vr(XR_+ks*4,4)}, v{vAd+ks} offset:{t*8192}")
    def rdv(t, j):
        s_, T = j >> 2, j & 3
        for hh in range(2):
            if not os.environ.get("X_NOLDS"): a(f"ds_read_b64_tr_b16 {vr(YR_+j*4+hh*2,2)}, v{vAv+T} offset:{(t*32+s_*16+hh*8)*256}")
    def mmk(t, ks):
        cin = vr(NEGM,16) if ks == 0 else vr(ss(t),16)
        a(f"{MF} {vr(ss(t),16)}, {vr(XR_+ks*4,4)}, {vr(QF+ks*4,4)}, {cin}")
    def mmv(t, j):
        s_, T = j >> 2, j & 3
        a(f"{MF} {vr(acc(T),16)}, {vr(YR_+j*4,4)}, {vr(pf(t,s_),4)}, {vr(acc(T),16)}")
    def cvt_ops(t):
        ops = []
        for s_ in range(2):
            p = pf(t, s_)
            x = ss(t) + s_ * 8
            for j in range(4):
                ops.append(f"v_cvt_pk_bf16_f32 v{p+j}, v{x+2*j}, v{x+2*j+1}")
        return ops
    NOSM = os.environ.get("X_NOSM")
    uid = [0]
    rare = []
    def sm_a(t, first_chk):
        if NOSM: return []
        uid[0] += 1
        u = uid[0]
        ops = []
        o = ops.append
        vals = [ss(t) + r for r in range(16)]
        mx, t1_ = vT, vT + 1
        o(f"v_max3_f32 v{mx}, v{vals[0]}, v{vals[1]}, v{vals[2]}")
        o(f"v_max3_f32 v{t1_}, v{vals[3]}, v{vals[4]}, v{vals[5]}")
        o(f"v_max3_f32 v{mx}, v{mx}, v{vals[6]}, v{vals[7]}")
        o(f"v_max3_f32 v{t1_}, v{t1_}, v{vals[8]}, v{vals[9]}")
        o(f"v_max3_f32 v{mx}, v{mx}, v{vals[10]}, v{vals[11]}")
        o(f"v_max3_f32 v{t1_}, v{t1_}, v{vals[12]}, v{vals[13]}")
        o(f"v_max3_f32 v{mx}, v{mx}, v{vals[14]}, v{vals[15]}")
        o(f"v_max_f32 v{mx}, v{mx}, v{t1_}")
        if first_chk:
            o(f"s_branch L_rare{u}\nL_back{u}:")
        else:
            o(f"v_cmp_lt_f32 vcc, 0x41000000, v{mx}\n    s_cbranch_vccnz L_rare{u}\nL_back{u}:")
        r = [f"L_rare{u}:"]
        R = lambda x: r.append("    " + x)
        R("s_nop 15")
        R(f"v_mov_b32 v{t1_}, v{mx}")
        R("s_nop 1")
        R(f"v_permlane32_swap_b32 v{mx}, v{t1_}")
        R("s_nop 1")
        R(f"v_max_f32 v{mx}, v{mx}, v{t1_}")
        if not first_chk:
            R(f"v_max_f32 v{mx}, 0, v{mx}")
            R(f"v_sub_f32 v{t1_}, 0, v{mx}")
            R(f"v_exp_f32 v{t1_}, v{t1_}")
        for i in range(16):
            R(f"v_sub_f32 v{NEGM+i}, v{NEGM+i}, v{mx}")
        for i in range(16):
            R(f"v_sub_f32 v{vals[i]}, v{vals[i]}, v{mx}")
        if not first_chk:
            R(f"v_mul_f32 v{vLp}, v{vLp}, v{t1_}")
            R(f"v_mul_f32 v{vLp+1}, v{vLp+1}, v{t1_}")
            for i in range(64):
                R(f"v_mul_f32 v{ACC+i}, v{ACC+i}, v{t1_}")
            for i in range(16):
                R(f"v_mul_f32 v{ss(1-t)+i}, v{ss(1-t)+i}, v{t1_}")
            for x in cvt_ops(1 - t):
                R(x)
        R("s_nop 1")
        R(f"s_branch L_back{u}")
        rare.append("\n".join(r))
        for x in vals[:8]:
            o(f"v_exp_f32 v{x}, v{x}")
        return ops
    def sm_b(t):
        if NOSM: return []
        ops = []
        o = ops.append
        vals = [ss(t) + r for r in range(16)]
        for x in vals[8:]:
            o(f"v_exp_f32 v{x}, v{x}")
        ops += cvt_ops(t)
        if PK:
            for i in range(0, 16, 2):
                o(f"v_pk_add_f32 {vr(vLp,2)}, {vr(vLp,2)}, {vr(vals[i],2)}")
        else:
            for i in range(0, 16, 2):
                o(f"v_add_f32 v{vLp}, v{vLp}, v{vals[i]}")
                o(f"v_add_f32 v{vLp+1}, v{vLp+1}, v{vals[i+1]}")
        return ops

    def group(mm, rd, ops, extra, nwait):
        k = 0
        for j in range(8):
            issued_now = min(2 * j, 8) * RD_PER[0] if rd else 0
            w = (7 - j) * nwait + issued_now
            mm(j)
            if rd and j < 4:
                rd(2 * j); rd(2 * j + 1)
            tgt = ((j + 1) * len(ops)) // 8
            while k < tgt:
                a(ops[k]); k += 1
            if j in extra:
                extra[j]()
    RD_PER = [1]

    NV = 9 if (PF_WO and not BURST) else 8
    a("s_waitcnt vmcnt(0) lgkmcnt(0)" if EARLYR else ("s_waitcnt vmcnt(8)" if BURST == 2 else "s_waitcnt vmcnt(12)"))
    a("s_barrier")
    k_addr()
    for ks in range(8):
        rdk(0, ks)
    a("s_waitcnt lgkmcnt(0)")
    for ks in range(8):
        mmk(0, ks)
    for ks in range(8):
        rdk(1, ks)
    a("s_nop 7")
    a("s_nop 3")
    for o in sm_a(0, True):
        a(o)
    a(f"s_mov_b32 s{sCnt}, 0")
    a.lab("L_at_loop")
    a(f"s_waitcnt vmcnt({NV}) lgkmcnt(0)")
    a("s_barrier")
    v_addr()
    if PF_WO and not BURST: pf_piece()
    pvv = dma_kv_pieces(False)
    pkk = dma_kv_pieces(True)
    RD_PER[0] = 2
    group(lambda j: mmk(1, j), lambda j: rdv(0, j), sm_b(0), {1: pkk[0], 3: pkk[1], 5: pkk[2], 7: pkk[3]}, 0)
    a(f"s_waitcnt vmcnt({NV})")
    a("s_barrier")
    k_addr()
    RD_PER[0] = 1
    a("s_waitcnt lgkmcnt(0)")
    group(lambda j: mmv(0, j), lambda j: rdk(0, j), ["s_nop 3"] + sm_a(1, False), {1: pvv[0], 3: pvv[1], 5: pvv[2], 7: pvv[3]}, 0)
    a(f"s_add_u32 s{sCnt}, s{sCnt}, 1")
    a(f"s_cmp_eq_u32 s{sCnt}, 8")
    a("s_cbranch_scc1 L_at_tail")
    RD_PER[0] = 2
    a("s_waitcnt lgkmcnt(0)")
    group(lambda j: mmk(0, j), lambda j: rdv(1, j), sm_b(1), {}, 0)
    RD_PER[0] = 1
    a("s_waitcnt lgkmcnt(0)")
    a("s_nop 1")
    group(lambda j: mmv(1, j), lambda j: rdk(1, j), ["s_nop 7"] + sm_a(0, False), {}, 0)
    a("s_branch L_at_loop")
    for r in rare:
        a.l.append(r)
    a.lab("L_at_tail")
    a("s_waitcnt lgkmcnt(0)")
    for j in range(8):
        rdv(1, j)
    for o in sm_b(1):
        a(o)
    a("s_waitcnt lgkmcnt(0)")
    a("s_nop 1")
    for j in range(8):
        mmv(1, j)
    stamp(a, 3)
    a("s_nop 7")
    a("s_nop 3")
    l = vLp
    a(f"v_add_f32 v{l}, v{l}, v{l+1}")
    a(f"v_mov_b32 v{vT+1}, v{l}")
    a("s_nop 1")
    a(f"v_permlane32_swap_b32 v{l}, v{vT+1}")
    a("s_nop 1")
    a(f"v_add_f32 v{l}, v{l}, v{vT+1}")
    a(f"v_rcp_f32 v{l}, v{l}")
    a("s_nop 0")
    a(f"s_mov_b32 s{sT1}, 7168")
    a(f"s_mov_b32 s{sT2}, 14336")
    a(f"s_mov_b32 s{sT3}, 21504")
    for T in range(4):
        for s_ in range(2):
            o = FR + (T * 2 + s_) * 4
            x = acc(T) + s_ * 8
            for r in range(8):
                a(f"v_mul_f32 v{x+r}, v{x+r}, v{l}")
            for j in range(4):
                a(f"v_cvt_pk_bf16_f32 v{o+j}, v{x+2*j}, v{x+2*j+1}")
            so = "0" if T == 0 else f"s{sT0+T}"
            a(f"buffer_store_dwordx4 {vr(o,4)}, v{vOst}, {sr(sO,4)}, {so} offen offset:{s_*512} {os.environ.get('OSF','')}")
    a.lab("L_attn_fin")
    if DIAG:
        a("s_waitcnt vmcnt(0)")
        stamp(a, 4)
        diag_dump(a, 52, sW, 128 << 20, 3)
    a.lab("L_attn_end")
    a("s_endpgm")

def gen_oproj(a):
    NST = OP_DEPTH
    assert 32 % NST == 0
    sW = 3
    sOo, sWO, sOUT = 20, 24, 28
    sKo, sKw = 32, 33
    sPo, sPw = 34, 35
    sCnt = 36
    sBig = 39
    sRing = 40
    vLane = 1
    vO0, vO1 = 2, 3
    vWd = 4
    vRd = 8
    g, c = 12, 13
    vT = 14
    ST = 32
    AF = ST + NST * 28
    def of(st, nt): return ST + st * 28 + nt * 4
    def acc(i, nt): return (nt * 4 + i) * 4
    RING = NST * 4096

    a.lab("oproj_kernel")
    a("s_cmp_ge_u32 s2, 256")
    a("s_cbranch_scc1 L_op_end")
    stamp(a, 0)
    if DIAG: a("s_memrealtime s[78:79]")
    a("s_and_b32 s4, s2, 7")
    a("s_lshr_b32 s5, s2, 3")
    a("s_lshr_b32 s6, s4, 2")
    a("s_bfe_u32 s7, s4, 0x10001")
    a("s_lshl_b32 s7, s7, 2")
    a("s_and_b32 s8, s5, 3")
    a("s_add_u32 s7, s7, s8")
    a("s_and_b32 s8, s4, 1")
    a("s_lshl_b32 s8, s8, 3")
    a("s_lshr_b32 s9, s5, 2")
    a("s_add_u32 s8, s8, s9")
    a("s_mul_i32 s9, s6, 40")
    a("s_add_u32 s10, s0, s9")
    a("s_addc_u32 s11, s1, 0")
    a("s_load_dwordx2 s[12:13], s[10:11], 32")
    a("s_load_dwordx2 s[14:15], s[0:1], 80")
    a("s_load_dwordx2 s[16:17], s[0:1], 96")
    a(f"v_and_b32 v{vLane}, 63, v0")
    a("v_lshrrev_b32 v8, 6, v0")
    a("s_nop 0")
    a(f"v_readfirstlane_b32 s{sW}, v8")
    a(f"s_mov_b32 s{sBig}, 0x7f000000")
    a(f"v_lshrrev_b32 v{g}, 4, v{vLane}")
    a(f"v_and_b32 v{c}, 15, v{vLane}")
    a(f"v_lshlrev_b32 v{vO0}, 4, v{vLane}")
    a(f"v_add_u32 v{vO1}, 4096, v{vO0}")
    a(f"s_mul_i32 s{sRing}, s{sW}, {RING}")
    t0, t1, t2 = 20, 21, 22
    a(f"v_lshrrev_b32 v{t0}, 3, v{vLane}")
    a(f"v_bfe_u32 v{t1}, v{vLane}, 4, 2")
    a(f"v_lshlrev_b32 v{t1}, 1, v{t1}")
    a(f"v_and_b32 v{t2}, 7, v{vLane}")
    a(f"v_xor_b32 v{t1}, v{t1}, v{t2}")
    a(f"v_lshlrev_b32 v{t1}, 4, v{t1}")
    a(f"v_lshl_add_u32 v{vWd}, v{t0}, 11, v{t1}")
    for i in range(1, 4):
        a(f"v_add_u32 v{vWd+i}, {i*(8*2048-1024)}, v{vWd}")
    rp, cp = 23, 24
    a(f"v_bfe_u32 v{rp}, v{vLane}, 2, 2")
    a(f"v_and_b32 v{cp}, 3, v{vLane}")
    a(f"v_and_b32 v{t0}, 1, v{g}")
    a(f"v_lshlrev_b32 v{t0}, 1, v{t0}")
    a(f"v_lshrrev_b32 v{t1}, 1, v{rp}")
    a(f"v_add_u32 v{t0}, v{t0}, v{t1}")
    a(f"v_lshlrev_b32 v{t0}, 1, v{t0}")
    a(f"v_lshrrev_b32 v{t1}, 1, v{cp}")
    a(f"v_xor_b32 v{t0}, v{t0}, v{t1}")
    a(f"v_lshlrev_b32 v{t0}, 4, v{t0}")
    a(f"v_and_b32 v{t1}, 1, v{cp}")
    a(f"v_lshl_or_b32 v{t0}, v{t1}, 3, v{t0}")
    a(f"v_and_b32 v{t1}, 1, v{g}")
    a(f"v_lshl_add_u32 v{t1}, v{t1}, 2, v{rp}")
    a(f"v_lshrrev_b32 v{t2}, 1, v{g}")
    a(f"v_lshl_add_u32 v{t1}, v{t2}, 4, v{t1}")
    a(f"v_lshl_add_u32 v{t0}, v{t1}, 7, v{t0}")
    a(f"v_add_u32 v{vRd}, s{sRing}, v{t0}")
    for i in range(1, 4):
        a(f"v_xor_b32 v{vRd+i}, {i<<5}, v{vRd}")
    a("s_waitcnt lgkmcnt(0)")
    a("s_lshl_b32 s9, s6, 3")
    a("s_add_u32 s9, s9, s7")
    a("s_mul_i32 s9, s9, 917504")
    a(f"s_add_u32 s{sOo}, s16, s9")
    a(f"s_addc_u32 s{sOo+1}, s17, 0")
    a(f"s_mov_b32 s{sOo+2}, 917504")
    a(f"s_mov_b32 s{sOo+3}, 0x00020000")
    a("s_lshl_b32 s9, s8, 7")
    a(f"s_add_u32 s{sWO}, s12, s9")
    a(f"s_addc_u32 s{sWO+1}, s13, 0")
    a(f"s_sub_u32 s{sWO+2}, 8388608, s9")
    a(f"s_mov_b32 s{sWO+3}, 0x00020000")
    a("s_mul_i32 s10, s7, 458752")
    a("s_lshl_b32 s11, s6, 11")
    a("s_add_u32 s10, s10, s11")
    a("s_add_u32 s10, s10, s9")
    a(f"s_add_u32 s{sOUT}, s14, s10")
    a(f"s_addc_u32 s{sOUT+1}, s15, 0")
    a(f"s_mov_b32 s{sOUT+2}, {111*4096+128}")
    a(f"s_mov_b32 s{sOUT+3}, 0x00020000")
    OROT = int(os.environ.get("OROT", "0"))
    sBo, sBw, sStep = 41, 42, 43
    a(f"s_mul_i32 s{sBo}, s{sW}, {32*7168}")
    a(f"s_lshl_b32 s{sBw}, s{sW}, 21")
    a(f"s_and_b32 s{sStep}, s7, 3")
    a(f"s_mul_i32 s{sStep}, s{sStep}, {OROT}")
    def set_off():
        a(f"s_and_b32 s{sStep}, s{sStep}, 31")
        a(f"s_mul_i32 s{sKo}, s{sStep}, 7168")
        a(f"s_add_u32 s{sKo}, s{sKo}, s{sBo}")
        a(f"s_lshl_b32 s{sKw}, s{sStep}, 16")
        a(f"s_add_u32 s{sKw}, s{sKw}, s{sBw}")
        a(f"s_add_u32 s{sStep}, s{sStep}, 1")
    set_off()

    def ld_wo(st, so):
        a(f"s_add_u32 m0, s{sRing}, {st*4096}")
        a("s_nop 0")
        for i in range(4):
            a(f"buffer_load_dwordx4 v{vWd+i}, {sr(sWO,4)}, s{so} offen offset:{i*1024} {os.environ.get('OPF','')} lds")
    RPF = 1 if PF_WO == 2 else 0
    OPD = int(os.environ.get("OPD", "8"))
    sPFk, sPFe = 44, 45
    vPFa, vPFdst = 25, 26
    if RPF:
        a(f"v_lshrrev_b32 v{vPFa}, 3, v{vLane}")
        a(f"v_lshlrev_b32 v{vPFa}, 11, v{vPFa}")
        a(f"v_and_b32 v{vPFdst}, 7, v{vLane}")
        a(f"v_lshl_add_u32 v{vPFa}, v{vPFdst}, 4, v{vPFa}")
        a("s_and_b32 s9, s7, 3")
        a("s_lshl_b32 s9, s9, 14")
        a(f"v_add_u32 v{vPFa}, s9, v{vPFa}")
        a(f"s_mov_b32 s{sPFk}, {OPD}")
    def ld_o(st, so):
        for nt in range(7):
            v = vO0 if nt < 4 else vO1
            a(f"buffer_load_dwordx4 {vr(of(st,nt),4)}, v{v}, {sr(sOo,4)}, s{so} offen offset:{(nt&3)*1024} {os.environ.get('OLF','')}")
        if RPF:
            a(f"s_lshl_b32 s{sPFe}, s{sPFk}, 16")
            a(f"s_add_u32 s{sPFe}, s{sPFe}, s{sBw}")
            a(f"s_cmp_lt_u32 s{sPFk}, 32")
            a(f"s_cselect_b32 s{sPFe}, s{sPFe}, s{sBig}")
            a(f"buffer_load_dword v{vPFdst}, v{vPFa}, {sr(sWO,4)}, s{sPFe} offen")
            a(f"s_add_u32 s{sPFk}, s{sPFk}, 1")
    def rd_af(st, buf):
        for i in range(4):
            for hh in range(2):
                a(f"ds_read_b64_tr_b16 {vr(AF+buf*16+i*4+hh*2,2)}, v{vRd+i} offset:{st*4096+hh*1024}")
    for st in range(NST):
        ld_wo(st, sKw)
        ld_o(st, sKo)
        set_off()
    for i in range(112):
        a(f"v_accvgpr_write_b32 a{i}, 0")
    stamp(a, 1)
    a(f"s_waitcnt vmcnt({(NST-1)*(11+RPF)+7+RPF})")
    rd_af(0, 0)
    a(f"s_mov_b32 s{sCnt}, 0")
    a.lab("L_op_loop")
    for st in range(NST):
        buf = st & 1
        nst = (st + 1) % NST
        a(f"s_cmp_lt_u32 s{sCnt}, {32//NST - 1}")
        a(f"s_cselect_b32 s{sPw}, s{sKw}, s{sBig}")
        a(f"s_cselect_b32 s{sPo}, s{sKo}, s{sBig}")
        a(f"s_waitcnt vmcnt({7+RPF+(NST-2)*(11+RPF)}) lgkmcnt(0)")
        ld_wo(st, sPw)
        rd_af(nst, buf ^ 1)
        for nt in range(7):
            for i in range(4):
                a(f"v_mfma_f32_16x16x32_bf16 {ar(acc(i,nt),4)}, {vr(AF+buf*16+i*4,4)}, {vr(of(st,nt),4)}, {ar(acc(i,nt),4)}")
        ld_o(st, sPo)
        set_off()
    a(f"s_add_u32 s{sCnt}, s{sCnt}, 1")
    a(f"s_cmp_lt_u32 s{sCnt}, {32//NST}")
    a("s_cbranch_scc1 L_op_loop")
    stamp(a, 2)
    a("s_waitcnt vmcnt(0) lgkmcnt(0)")
    a("s_barrier")
    a(f"v_add_u32 v{vT+3}, 57344, v{vO0}")
    for wv in range(4):
        a(f"s_cmp_lg_u32 s{sW}, {wv}")
        a(f"s_cbranch_scc1 L_epw{wv}")
        for i in range(4):
            if i == wv: continue
            slot = (wv - i - 1) & 3
            base = i * 21504 + slot * 7168
            vb, off = (vO0, base) if base + 6144 < 65536 else (vT + 3, base - 57344)
            if i == 3 or (i == 2):
                pass
            for nt in range(7):
                o_ = base + nt * 1024
                if o_ < 65536:
                    a(f"ds_write_b128 v{vO0}, {ar(acc(i,nt),4)} offset:{o_}")
                else:
                    a(f"ds_write_b128 v{vT+3}, {ar(acc(i,nt),4)} offset:{o_-57344}")
        for nt in range(7):
            for r in range(4):
                a(f"v_accvgpr_read_b32 v{32+nt*4+r}, a{acc(wv,nt)+r}")
        a.lab(f"L_epw{wv}")
    a("s_waitcnt lgkmcnt(0)")
    a("s_barrier")
    a(f"s_mul_i32 s4, s{sW}, 21504")
    a(f"v_add_u32 v{vT}, s4, v{vO0}")
    a(f"v_lshlrev_b32 v{vT+2}, 12, v{c}")
    a(f"v_lshl_add_u32 v{vT+2}, v{g}, 3, v{vT+2}")
    a(f"s_lshl_b32 s4, s{sW}, 5")
    a(f"v_add_u32 v{vT+2}, s4, v{vT+2}")
    R = 64
    for nt in range(7):
        for sl in range(3):
            a(f"ds_read_b128 {vr(R+(nt*3+sl)*4,4)}, v{vT} offset:{sl*7168+nt*1024}")
    for nt in range(7):
        a(f"s_waitcnt lgkmcnt({min(15, (6-nt)*3)})")
        for r in range(4):
            x = 32 + nt * 4 + r
            b0 = R + nt * 12 + r
            a(f"v_add_f32 v{b0}, v{b0}, v{b0+4}")
            a(f"v_add_f32 v{x}, v{x}, v{b0+8}")
            a(f"v_add_f32 v{x}, v{x}, v{b0}")
        x = 32 + nt * 4
        O = 160 + nt * 2
        a(f"v_cvt_pk_bf16_f32 v{O}, v{x}, v{x+1}")
        a(f"v_cvt_pk_bf16_f32 v{O+1}, v{x+2}, v{x+3}")
        a(f"s_mov_b32 s5, {nt*65536}")
        a(f"buffer_store_dwordx2 {vr(O,2)}, v{vT+2}, {sr(sOUT,4)}, s5 offen {os.environ.get('OUTF','')}")
    a.lab("L_op_fin")
    if DIAG:
        a("s_waitcnt vmcnt(0)")
        stamp(a, 3)
        diag_dump(a, 16, sW, 129 << 20)
    a.lab("L_op_end")
    a("s_endpgm")
    return AF + 32


HEADER = open("cdna_kernels/" + NAME + ".s.ref").read().split("; Override launch")[0]

def kd(name, vgpr, accum, sgpr=102):
    return f""".amdhsa_kernel {name}
  .amdhsa_next_free_vgpr {vgpr}
  .amdhsa_next_free_sgpr {sgpr}
  .amdhsa_accum_offset {accum}
  .amdhsa_group_segment_fixed_size 0
  .amdhsa_kernarg_size 104
  .amdhsa_user_sgpr_count 2
  .amdhsa_user_sgpr_kernarg_segment_ptr 1
  .amdhsa_system_sgpr_workgroup_id_x 1
.end_amdhsa_kernel
"""

def main():
    out = HEADER
    out += "; @launch kernel=attn_kernel grid=(256,1,1) block=(512,1,1) lds=163840\n"
    out += "; @launch kernel=oproj_kernel grid=(256,1,1) block=(256,1,1) lds=114688\n"
    out += '.amdgcn_target "amdgcn-amd-amdhsa--gfx950"\n.text\n'
    for name, fn in (("attn_kernel", gen_attn), ("oproj_kernel", gen_oproj)):
        a = A()
        fn(a)
        out += f".globl {name}\n.p2align 8\n.type {name},@function\n" + a.text()
    out += '.section .rodata,"a"\n.p2align 6\n'
    out += kd("attn_kernel", 256, 256)
    out += ".p2align 6\n"
    out += kd("oproj_kernel", 368, 256)
    path = sys.argv[1] if len(sys.argv) > 1 else "cdna_kernels/" + NAME + ".s"
    open(path, "w").write(out)

if __name__ == "__main__":
    main()
```

```python
import sys, os, struct
DIAG = int(os.environ.get("DIAG", "0"))
NAME = "concat_heads__mha_block_cached__mha_block_cached__near_ridge"
PF_WQ = int(os.environ.get("PF_WQ", "1"))
PF_WO = int(os.environ.get("PF_WO", "1"))
OP_DEPTH = int(os.environ.get("OP_DEPTH", "4"))
PRIO = int(os.environ.get("PRIO", "1"))
FUSE = int(os.environ.get("FUSE", "1"))

class A:
    def __init__(self):
        self.l = []
    def __call__(self, s):
        self.l.append("    " + s)
    def lab(self, s):
        self.l.append(s + ":")
    def text(self):
        return "\n".join(self.l) + "\n"

def vr(a, n):
    return f"v[{a}:{a+n-1}]" if n > 1 else f"v{a}"
def ar(a, n):
    return f"a[{a}:{a+n-1}]" if n > 1 else f"a{a}"
def sr(a, n):
    return f"s[{a}:{a+n-1}]" if n > 1 else f"s{a}"

SCALE_C = 0.08838834764831845 * 1.4426950408889634
def f32bits(x):
    return struct.unpack("<I", struct.pack("<f", x))[0]

def stamp(a, i):
    if DIAG:
        a("s_waitcnt lgkmcnt(0)")
        a(f"s_mem{'real' if DIAG == 2 else ''}time s[{60+2*i}:{61+2*i}]")
        a("s_waitcnt lgkmcnt(0)")
def diag_dump(a, wsreg, sW, region, lg=2):
    if not DIAG: return
    if DIAG == 2:
        u = region
        a(f"s_cmp_lg_u32 s{sW}, 0")
        a(f"s_cbranch_scc1 L_dd{u}")
        if lg == 3:
            a("s_and_b32 s84, s2, 63")
            a("s_lshr_b32 s85, s2, 6")
            a("s_cmp_lg_u32 s84, s85")
            a(f"s_cbranch_scc1 L_dd{u}")
            a(f"s_add_u32 s88, s{wsreg}, {200<<20}")
            a(f"s_addc_u32 s89, s{wsreg+1}, 0")
            a("s_mov_b32 s90, 256")
            a("s_mov_b32 s91, 0x00020000")
            a("s_lshl_b32 s84, s85, 4")
            a("v_mov_b32 v1, s84")
            for i in range(4):
                a(f"s_sub_u32 s85, s{62+2*i}, s{60+2*i}")
                a("v_mov_b32 v2, s85")
                a(f"buffer_store_dword v2, v1, s[88:91], 0 offen offset:{i*4}")
                a("s_waitcnt vmcnt(0)")
        else:
            a("s_cmp_lg_u32 s2, 0")
            a(f"s_cbranch_scc1 L_dd{u}")
            a(f"s_add_u32 s88, s{wsreg}, {200<<20}")
            a(f"s_addc_u32 s89, s{wsreg+1}, 0")
            a("s_mov_b32 s90, 64")
            a("s_mov_b32 s91, 0x00020000")
            a("s_load_dwordx2 s[84:85], s[0:1], 88")
            a("v_and_b32 v1, 63, v0")
            a("v_lshlrev_b32 v1, 2, v1")
            a("buffer_load_dword v2, v1, s[88:91], 0 offen")
            a("s_waitcnt vmcnt(0) lgkmcnt(0)")
            a("s_mov_b32 s86, 64")
            a("s_mov_b32 s87, 0x00020000")
            a("buffer_store_dword v2, v1, s[84:87], 0 offen")
            a("s_waitcnt vmcnt(0)")
        a.lab(f"L_dd{u}")
        return
    a("s_memrealtime s[80:81]")
    a("s_getreg_b32 s82, hwreg(HW_REG_HW_ID)")
    a("s_getreg_b32 s83, hwreg(HW_REG_XCC_ID)")
    a("s_waitcnt lgkmcnt(0)")
    a(f"s_lshl_b32 s84, s2, {lg}")
    a(f"s_add_u32 s84, s84, s{sW}")
    a(f"s_lshl_b32 s84, s84, 7")
    a(f"s_add_u32 s84, s84, {region}")
    a(f"s_add_u32 s88, s{wsreg}, s84")
    a(f"s_addc_u32 s89, s{wsreg+1}, 0")
    a("s_mov_b32 s90, 128")
    a("s_mov_b32 s91, 0x00020000")
    a("v_mov_b32 v1, 0")
    for i in range(24):
        a(f"v_mov_b32 v2, s{60+i}")
        a(f"buffer_store_dword v2, v1, s[88:91], 0 offen offset:{i*4}")
        a("s_waitcnt vmcnt(0)")

class VM:
    def __init__(self):
        self.ops = []
    def issue(self, tag, n):
        self.ops += [tag] * n
    def need(self, *tags):
        last = max(i for i, t in enumerate(self.ops) if t in tags)
        for t in tags:
            assert t in self.ops, t
        return len(self.ops) - 1 - last

KVF = os.environ.get("KVF", "")
WQF = os.environ.get("WQF", "")
KV_START = int(os.environ.get("KV_START", "20"))


def gen_phase2(a, sW):
    NST = 3 if False else 4
    NST = int(os.environ.get("F_NST", "2"))
    assert 16 % NST == 0
    sOo, sWO, sOUT, sDB = 20, 24, 28, 32
    sKo, sKw, sPo, sPw = 36, 37, 38, 39
    sCnt, sBig, sRing = 40, 41, 42
    vLane = 1
    vO0, vO1 = 2, 3
    vWd = 4
    vRd = 8
    g, c = 12, 13
    vT = 14
    ACC = 32
    ST = 144
    AF = ST + NST * 28
    assert AF + 32 <= 256
    def of(st, nt): return ST + st * 28 + nt * 4
    def acc(i, nt): return ACC + (nt * 4 + i) * 4
    RING = NST * 4096
    a("s_waitcnt vmcnt(0) lgkmcnt(0)")
    a("s_barrier")
    a("s_load_dwordx2 s[32:33], s[0:1], 88")
    a("s_load_dwordx2 s[14:15], s[0:1], 80")
    a("s_lshl_b32 s9, s6, 3")
    a("s_add_u32 s9, s9, s8")
    a("s_lshl_b32 s9, s9, 2")
    a("s_waitcnt lgkmcnt(0)")
    a(f"s_mov_b32 s{sDB+2}, 256")
    a(f"s_mov_b32 s{sDB+3}, 0x00020000")
    a(f"s_cmp_lg_u32 s{sW}, 0")
    a("s_cbranch_scc1 L_nopub")
    a("v_mov_b32 v2, s9")
    a("v_mov_b32 v3, 1")
    a("s_mov_b64 s[10:11], exec")
    a("s_mov_b64 exec, 1")
    a(f"buffer_atomic_add v3, v2, {sr(sDB,4)}, 0 offen sc1")
    a("s_mov_b64 exec, s[10:11]")
    a.lab("L_nopub")
    a("s_and_b32 s4, s2, 7")
    a("s_lshr_b32 s5, s2, 3")
    a("s_lshr_b32 s6, s4, 2")
    a("s_bfe_u32 s7, s4, 0x10001")
    a("s_lshl_b32 s7, s7, 2")
    a("s_and_b32 s8, s5, 3")
    a("s_add_u32 s7, s7, s8")
    a("s_and_b32 s8, s4, 1")
    a("s_lshl_b32 s8, s8, 3")
    a("s_lshr_b32 s9, s5, 2")
    a("s_add_u32 s8, s8, s9")
    a(f"s_mov_b32 s{sBig}, 0x7f000000")
    a(f"v_lshrrev_b32 v{g}, 4, v{vLane}")
    a(f"v_and_b32 v{c}, 15, v{vLane}")
    a(f"v_lshlrev_b32 v{vO0}, 4, v{vLane}")
    a(f"v_add_u32 v{vO1}, 4096, v{vO0}")
    a(f"s_mul_i32 s{sRing}, s{sW}, {RING}")
    t0, t1, t2 = 20, 21, 22
    a(f"v_lshrrev_b32 v{t0}, 3, v{vLane}")
    a(f"v_bfe_u32 v{t1}, v{vLane}, 4, 2")
    a(f"v_lshlrev_b32 v{t1}, 1, v{t1}")
    a(f"v_and_b32 v{t2}, 7, v{vLane}")
    a(f"v_xor_b32 v{t1}, v{t1}, v{t2}")
    a(f"v_lshlrev_b32 v{t1}, 4, v{t1}")
    a(f"v_lshl_add_u32 v{vWd}, v{t0}, 11, v{t1}")
    for i in range(1, 4):
        a(f"v_add_u32 v{vWd+i}, {i*(8*2048-1024)}, v{vWd}")
    rp, cp = 23, 24
    a(f"v_bfe_u32 v{rp}, v{vLane}, 2, 2")
    a(f"v_and_b32 v{cp}, 3, v{vLane}")
    a(f"v_and_b32 v{t0}, 1, v{g}")
    a(f"v_lshlrev_b32 v{t0}, 1, v{t0}")
    a(f"v_lshrrev_b32 v{t1}, 1, v{rp}")
    a(f"v_add_u32 v{t0}, v{t0}, v{t1}")
    a(f"v_lshlrev_b32 v{t0}, 1, v{t0}")
    a(f"v_lshrrev_b32 v{t1}, 1, v{cp}")
    a(f"v_xor_b32 v{t0}, v{t0}, v{t1}")
    a(f"v_lshlrev_b32 v{t0}, 4, v{t0}")
    a(f"v_and_b32 v{t1}, 1, v{cp}")
    a(f"v_lshl_or_b32 v{t0}, v{t1}, 3, v{t0}")
    a(f"v_and_b32 v{t1}, 1, v{g}")
    a(f"v_lshl_add_u32 v{t1}, v{t1}, 2, v{rp}")
    a(f"v_lshrrev_b32 v{t2}, 1, v{g}")
    a(f"v_lshl_add_u32 v{t1}, v{t2}, 4, v{t1}")
    a(f"v_lshl_add_u32 v{t0}, v{t1}, 7, v{t0}")
    a(f"v_add_u32 v{vRd}, s{sRing}, v{t0}")
    for i in range(1, 4):
        a(f"v_xor_b32 v{vRd+i}, {i<<5}, v{vRd}")
    a("s_lshl_b32 s9, s6, 3")
    a("s_add_u32 s9, s9, s7")
    a("s_lshl_b32 s43, s9, 2")
    a("s_mul_i32 s9, s9, 917504")
    a(f"s_add_u32 s{sOo}, s52, s9")
    a(f"s_addc_u32 s{sOo+1}, s53, 0")
    a(f"s_mov_b32 s{sOo+2}, 917504")
    a(f"s_mov_b32 s{sOo+3}, 0x00020000")
    a("s_lshl_b32 s9, s8, 7")
    a(f"s_add_u32 s{sWO}, s94, s9")
    a(f"s_addc_u32 s{sWO+1}, s95, 0")
    a(f"s_sub_u32 s{sWO+2}, 8388608, s9")
    a(f"s_mov_b32 s{sWO+3}, 0x00020000")
    a("s_mul_i32 s10, s7, 458752")
    a("s_lshl_b32 s11, s6, 11")
    a("s_add_u32 s10, s10, s11")
    a("s_add_u32 s10, s10, s9")
    a(f"s_add_u32 s{sOUT}, s14, s10")
    a(f"s_addc_u32 s{sOUT+1}, s15, 0")
    a(f"s_mov_b32 s{sOUT+2}, {111*4096+128}")
    a(f"s_mov_b32 s{sOUT+3}, 0x00020000")
    def ld_wo(st, so):
        a(f"s_add_u32 m0, s{sRing}, {st*4096}")
        a("s_nop 0")
        for i in range(4):
            a(f"buffer_load_dwordx4 v{vWd+i}, {sr(sWO,4)}, s{so} offen offset:{i*1024} lds")
    def ld_o(st, so):
        for nt in range(7):
            v = vO0 if nt < 4 else vO1
            a(f"buffer_load_dwordx4 {vr(of(st,nt),4)}, v{v}, {sr(sOo,4)}, s{so} offen offset:{(nt&3)*1024}")
    def rd_af(st, buf):
        for i in range(4):
            for hh in range(2):
                a(f"ds_read_b64_tr_b16 {vr(AF+buf*16+i*4+hh*2,2)}, v{vRd+i} offset:{st*4096+hh*1024}")
    sId = 46
    vCa, vOne, vCl = 27, 28, 29
    CNT_ADDR = 163840 - 16
    a(f"v_mov_b32 v{vCa}, {CNT_ADDR}")
    a(f"v_mov_b32 v{vOne}, 1")
    a(f"s_cmp_lg_u32 s{sW}, 0")
    a("s_cbranch_scc1 L_noinit")
    a(f"v_mov_b32 v{vCl}, {8*NST}")
    a(f"ds_write_b32 v{vCa}, v{vCl}")
    a.lab("L_noinit")
    for st in range(NST):
        a(f"s_add_u32 s{sId+st}, s{sW}, {st*8}")
        a(f"s_lshl_b32 s44, s{sId+st}, 16")
        ld_wo(st, 44)
    if int(os.environ.get("WPF", "1")):
        a(f"v_lshrrev_b32 v25, 3, v{vLane}")
        a(f"v_lshlrev_b32 v25, 11, v25")
        a(f"v_and_b32 v26, 7, v{vLane}")
        a(f"v_lshl_add_u32 v25, v26, 4, v25")
        a("s_and_b32 s9, s7, 3")
        a("s_lshl_b32 s9, s9, 14")
        a(f"v_add_u32 v25, s9, v25")
        a(f"s_add_u32 s9, s{sW}, {NST*8}")
        a(f"s_lshl_b32 s9, s9, 16")
        for k in range(NST, 16):
            a(f"buffer_load_dword v26, v25, {sr(sWO,4)}, s9 offen")
            a(f"s_add_u32 s9, s9, {8*65536}")
    for i in range(112):
        a(f"v_mov_b32 v{ACC+i}, 0")
    a(f"s_cmp_lg_u32 s{sW}, 0")
    a("s_cbranch_scc1 L_nopoll")
    a("v_mov_b32 v20, s43")
    a("s_mov_b32 s45, 0")
    a("s_mov_b64 s[10:11], exec")
    a("s_mov_b64 exec, 1")
    a.lab("L_poll")
    a("v_mov_b32 v21, 0")
    a(f"buffer_atomic_add v21, v20, {sr(sDB,4)}, 0 offen sc0 sc1")
    a("s_waitcnt vmcnt(0)")
    a("v_readfirstlane_b32 s44, v21")
    a("s_add_u32 s45, s45, 1")
    a("s_cmp_ge_u32 s44, 16")
    a("s_cbranch_scc1 L_pdone")
    a("s_sleep 2")
    a("s_cmp_lt_u32 s45, 200000")
    a("s_cbranch_scc1 L_poll")
    a.lab("L_pdone")
    a("s_mov_b64 exec, s[10:11]")
    a.lab("L_nopoll")
    stamp(a, 5)
    a("s_waitcnt lgkmcnt(0)")
    a("s_barrier")
    stamp(a, 6)
    for st in range(NST):
        a(f"s_mul_i32 s44, s{sId+st}, 7168")
        ld_o(st, 44)
    def claim():
        a("s_mov_b64 exec, 1")
        a(f"ds_add_rtn_u32 v{vCl}, v{vCa}, v{vOne}")
        a("s_mov_b64 exec, -1")
    claim()
    a(f"s_waitcnt vmcnt({NST*7})")
    rd_af(0, 0)
    a.lab("L_f_loop")
    for st in range(NST):
        buf = st & 1
        nst = (st + 1) % NST
        a(f"s_cmp_ge_u32 s{sId+st}, 128")
        a("s_cbranch_scc1 L_f_done")
        a(f"s_waitcnt vmcnt({min(7+(NST-2)*11, (NST-1-st)*7 + st*11)}) lgkmcnt(0)")
        a(f"v_readfirstlane_b32 s{sId+st}, v{vCl}")
        claim()
        a(f"s_lshl_b32 s{sPw}, s{sId+st}, 16")
        a(f"s_mul_i32 s{sPo}, s{sId+st}, 7168")
        a(f"s_cmp_lt_u32 s{sId+st}, 128")
        a(f"s_cselect_b32 s{sPw}, s{sPw}, s{sBig}")
        a(f"s_cselect_b32 s{sPo}, s{sPo}, s{sBig}")
        ld_wo(st, sPw)
        rd_af(nst, buf ^ 1)
        for nt in range(7):
            for i in range(4):
                a(f"v_mfma_f32_16x16x32_bf16 {vr(acc(i,nt),4)}, {vr(AF+buf*16+i*4,4)}, {vr(of(st,nt),4)}, {vr(acc(i,nt),4)}")
        ld_o(st, sPo)
    a("s_branch L_f_loop")
    a.lab("L_f_done")
    a("s_nop 7")
    stamp(a, 7)
    a("s_waitcnt vmcnt(0) lgkmcnt(0)")
    a("s_barrier")
    a(f"s_lshl_b32 s4, s{sW}, 10")
    a(f"v_add_u32 v{vT}, s4, v{vO0}")
    a(f"v_add_u32 v{vT+1}, 65536, v{vT}")
    a(f"v_lshlrev_b32 v{vT+2}, 12, v{c}")
    a(f"v_lshl_add_u32 v{vT+2}, v{g}, 3, v{vT+2}")
    R = 144
    for rnd, nts in ((0, (0, 1, 2, 3)), (1, (4, 5, 6))):
        tiles = [(nt, i) for nt in nts for i in range(4)]
        for ti, (nt, i) in enumerate(tiles):
            off = ti * 8192
            if off < 65536:
                a(f"ds_write_b128 v{vT}, {vr(acc(i,nt),4)} offset:{off}")
            else:
                a(f"ds_write_b128 v{vT+1}, {vr(acc(i,nt),4)} offset:{off-65536}")
        a("s_waitcnt lgkmcnt(0)")
        a("s_barrier")
        for half in range(2):
            lab = f"L_skip{rnd}{half}"
            ntile = len(tiles)
            if half * 8 + 7 >= ntile:
                a(f"s_cmp_ge_u32 s{sW}, {ntile - half*8}")
                a(f"s_cbranch_scc1 {lab}")
            a(f"s_add_u32 s5, s{sW}, {half*8}")
            a("s_lshl_b32 s4, s5, 13")
            a(f"v_add_u32 v{vT+3}, s4, v{vO0}")
            for pw in range(8):
                a(f"ds_read_b128 {vr(R+pw*4,4)}, v{vT+3} offset:{pw*1024}")
            a("s_lshr_b32 s4, s5, 2")
            a(f"s_add_u32 s4, s4, {nts[0]}")
            a("s_lshl_b32 s4, s4, 16")
            a("s_and_b32 s5, s5, 3")
            a("s_lshl_b32 s5, s5, 5")
            a("s_add_u32 s4, s4, s5")
            a("s_waitcnt lgkmcnt(0)")
            for r in range(4):
                for pw in (0, 2, 4, 6):
                    a(f"v_add_f32 v{R+pw*4+r}, v{R+pw*4+r}, v{R+(pw+1)*4+r}")
                a(f"v_add_f32 v{R+r}, v{R+r}, v{R+8+r}")
                a(f"v_add_f32 v{R+16+r}, v{R+16+r}, v{R+24+r}")
                a(f"v_add_f32 v{R+r}, v{R+r}, v{R+16+r}")
            O = R + 32 + (rnd * 2 + half) * 2
            a(f"v_cvt_pk_bf16_f32 v{O}, v{R}, v{R+1}")
            a(f"v_cvt_pk_bf16_f32 v{O+1}, v{R+2}, v{R+3}")
            a(f"buffer_store_dwordx2 {vr(O,2)}, v{vT+2}, {sr(sOUT,4)}, s4 offen {os.environ.get('OUTF','')}")
            a.lab(lab)
        if rnd == 0:
            a("s_barrier")

def gen_attn(a):
    PK = int(os.environ.get("PK", "1"))
    STAG = int(os.environ.get("STAG", "0"))
    sW = 3
    sWq = 99
    sE = 96
    sX, sWQ, sK, sV, sO, sWO = 20, 24, 28, 32, 36, 56
    sSlotR, sSlotW = 40, 41
    sM0kv = 42
    sWQoff = 43
    sXoff = 44
    sKVoff = 45
    sCnt = 46
    sC = 47
    sT0, sT1, sT2, sT3 = 48, 49, 50, 51
    sM0q = 92
    sM0x = 93
    vLane = 1
    vWQd = 2
    vXd = 4
    vKd = 6
    vVd = 10
    vA0k, vA0v = 11, 12
    vOst = 13
    vAd = 14
    vAv = 22
    vM = 26
    vLp = 28
    vT = 30
    vPFd = 44
    vP = 48
    ACC = 64
    FR = 128
    QF = 192
    SS = 224
    QB = [128, 160]
    XB = [192, 208]
    WQ0, X0 = 65536, 131072
    MF = "v_mfma_f32_32x32x16_bf16"

    def acc(T): return ACC + T * 16
    def ss(t): return SS + t * 16
    def pf(t, s_): return vP + (t * 2 + s_) * 4

    a.lab("attn_kernel")
    a("s_cmp_ge_u32 s2, 256")
    a("s_cbranch_scc1 L_attn_end")
    stamp(a, 0)
    if DIAG: a("s_memrealtime s[78:79]")
    a("s_and_b32 s4, s2, 7")
    a("s_lshr_b32 s5, s2, 3")
    a("s_lshr_b32 s6, s4, 2")
    a("s_and_b32 s7, s4, 3")
    a("s_lshl_b32 s7, s7, 2")
    a("s_and_b32 s8, s5, 3")
    a("s_add_u32 s7, s7, s8")
    a("s_lshr_b32 s8, s5, 2")
    a("s_mul_i32 s9, s6, 40")
    a("s_add_u32 s10, s0, s9")
    a("s_addc_u32 s11, s1, 0")
    a("s_load_dwordx8 s[12:19], s[10:11], 0")
    a("s_load_dwordx2 s[94:95], s[10:11], 32")
    a("s_load_dwordx2 s[52:53], s[0:1], 96")
    a(f"v_and_b32 v{vLane}, 63, v0")
    a("v_lshrrev_b32 v2, 6, v0")
    a("s_nop 0")
    a(f"v_readfirstlane_b32 s{sW}, v2")
    a(f"s_mov_b32 s{sC}, 0x{f32bits(SCALE_C):08x}")
    a(f"s_mov_b32 s100, 0x{f32bits(SCALE_C):08x}")
    a(f"s_mov_b32 s101, 0x{f32bits(SCALE_C):08x}")
    g, c, rp, cp, hh_, m_ = 36, 37, 38, 39, 42, 43
    t0, t1 = 40, 41
    a(f"v_lshrrev_b32 v{g}, 4, v{vLane}")
    a(f"v_and_b32 v{c}, 15, v{vLane}")
    a(f"v_bfe_u32 v{rp}, v{vLane}, 2, 2")
    a(f"v_and_b32 v{cp}, 3, v{vLane}")
    a(f"v_lshrrev_b32 v{hh_}, 5, v{vLane}")
    a(f"v_and_b32 v{m_}, 31, v{vLane}")
    a(f"s_and_b32 s{sWq}, s{sW}, 3")
    a(f"s_lshr_b32 s{sE}, s{sW}, 2")
    a(f"s_lshl_b32 s{sM0kv}, s{sW}, 12")
    a(f"s_lshl_b32 s{sM0q}, s{sW}, 11")
    a(f"s_add_u32 s{sM0x}, s{sM0q}, {X0}")
    a(f"s_add_u32 s{sM0q}, s{sM0q}, {WQ0}")
    a(f"v_lshlrev_b32 v{t1}, 2, v{hh_}")
    a(f"v_xor_b32 v{t1}, v{t1}, v{c}")
    a(f"v_lshlrev_b32 v{t1}, 4, v{t1}")
    a(f"v_lshl_add_u32 v{t1}, v{hh_}, 13, v{t1}")
    a(f"v_and_b32 v{t0}, 1, v{g}")
    a(f"v_lshl_add_u32 v{t1}, v{t0}, 8, v{t1}")
    a(f"s_lshl_b32 s{sT0}, s{sW}, 15")
    a(f"v_add_u32 v{vWQd}, s{sT0}, v{t1}")
    a(f"v_xor_b32 v{t1}, 128, v{vWQd}")
    a(f"v_add_u32 v{vWQd+1}, {2*8192-1024}, v{t1}")
    a(f"v_and_b32 v{t1}, 7, v{vLane}")
    a(f"v_xor_b32 v{t0}, v{g}, v{t1}")
    a(f"v_lshlrev_b32 v{t0}, 4, v{t0}")
    a(f"v_lshrrev_b32 v{t1}, 3, v{vLane}")
    a(f"v_lshl_add_u32 v{t0}, v{t1}, 11, v{t0}")
    a(f"v_add_u32 v{vXd}, s{sT0}, v{t0}")
    a(f"v_xor_b32 v{t0}, 64, v{vXd}")
    a(f"v_add_u32 v{vXd+1}, {8*2048-1024}, v{t0}")
    a("s_waitcnt lgkmcnt(0)")
    a("s_mul_i32 s9, s8, 229376")
    a(f"s_add_u32 s{sX}, s12, s9")
    a(f"s_addc_u32 s{sX+1}, s13, 0")
    a(f"s_mov_b32 s{sX+2}, 229376")
    a(f"s_mov_b32 s{sX+3}, 0x00020000")
    a("s_lshl_b32 s9, s7, 9")
    a(f"s_add_u32 s{sWQ}, s18, s9")
    a(f"s_addc_u32 s{sWQ+1}, s19, 0")
    a(f"s_sub_u32 s{sWQ+2}, 8388608, s9")
    a(f"s_mov_b32 s{sWQ+3}, 0x00020000")
    a(f"s_mov_b32 s{sWQoff}, 0")
    a(f"s_mov_b32 s{sXoff}, 0")

    vm = VM()
    XF = os.environ.get("XF", "")
    def wq_pieces(cn):
        q = cn & 3
        def p0():
            a(f"s_add_u32 m0, s{sM0q}, {q*16384}")
            a("s_nop 0")
            a(f"buffer_load_dwordx4 v{vWQd}, {sr(sWQ,4)}, s{sWQoff} offen {WQF} lds")
            vm.issue(("wq", cn), 1)
        def p1():
            a(f"s_add_u32 m0, s{sM0q}, {q*16384}")
            a("s_nop 0")
            a(f"buffer_load_dwordx4 v{vWQd+1}, {sr(sWQ,4)}, s{sWQoff} offen offset:1024 {WQF} lds")
            if not os.environ.get("NOADV"): a(f"s_add_u32 s{sWQoff}, s{sWQoff}, {32*8192}")
            vm.issue(("wq", cn), 1)
        return [p0, p1]
    def x_pieces(m):
        q = m & 1
        def p0():
            a(f"s_add_u32 m0, s{sM0x}, {q*16384}")
            a("s_nop 0")
            a(f"buffer_load_dwordx4 v{vXd}, {sr(sX,4)}, s{sXoff} offen {XF} lds")
            vm.issue(("x", m), 1)
        def p1():
            a(f"s_add_u32 m0, s{sM0x}, {q*16384}")
            a("s_nop 0")
            a(f"buffer_load_dwordx4 v{vXd+1}, {sr(sX,4)}, s{sXoff} offen offset:1024 {XF} lds")
            if not os.environ.get("NOADV"): a(f"s_add_u32 s{sXoff}, s{sXoff}, 128")
            vm.issue(("x", m), 1)
        return [p0, p1]
    def kv_voff(isK, i):
        return vKd + i if isK else vVd
    def kv_pieces(n):
        isK = n % 2 == 0
        srd = sK if isK else sV
        out = []
        for i in range(4):
            def p(i=i):
                a(f"s_add_u32 m0, s{sM0kv}, {n*32768}")
                a(f"s_mov_b32 s{sT0}, {(n>>1)*16384}")
                a(f"buffer_load_dwordx4 v{kv_voff(isK,i)}, {sr(srd,4)}, s{sT0} offen offset:{i*1024} {KVF} lds")
                vm.issue(("kv", n), 1)
            out.append(p)
        return out

    for p in x_pieces(0) + wq_pieces(0) + wq_pieces(1) + x_pieces(1) + wq_pieces(2) + wq_pieces(3):
        p()

    a(f"v_bfe_u32 v{t0}, v{m_}, 1, 3")
    a(f"v_xor_b32 v{t0}, v{t0}, v{hh_}")
    a(f"v_lshlrev_b32 v{t0}, 4, v{t0}")
    a(f"v_lshl_add_u32 v{t0}, v{m_}, 7, v{t0}")
    a(f"s_lshl_b32 s{sT0}, s{sWq}, 12")
    a(f"s_add_u32 s{sT0}, s{sT0}, {X0}")
    a(f"v_add_u32 v{vAd+4}, s{sT0}, v{t0}")
    for k in range(1, 4):
        a(f"v_xor_b32 v{vAd+4+k}, {k<<5}, v{vAd+4}")
    a(f"v_and_b32 v{t0}, 1, v{g}")
    a(f"v_and_b32 v{t1}, 1, v{cp}")
    a(f"v_lshl_or_b32 v{t0}, v{t0}, 1, v{t1}")
    a(f"v_lshl_or_b32 v{t0}, v{rp}, 2, v{t0}")
    a(f"v_lshlrev_b32 v{t0}, 4, v{t0}")
    a(f"v_lshrrev_b32 v{t1}, 1, v{cp}")
    a(f"v_lshl_or_b32 v{t0}, v{t1}, 3, v{t0}")
    a(f"v_lshl_add_u32 v{t1}, v{hh_}, 3, v{rp}")
    a(f"v_lshl_add_u32 v{t0}, v{t1}, 9, v{t0}")
    a(f"s_lshl_b32 s{sT0}, s{sE}, 8")
    a(f"s_add_u32 s{sT0}, s{sT0}, {WQ0}")
    a(f"v_add_u32 v{vAd}, s{sT0}, v{t0}")
    for k in range(1, 4):
        a(f"v_xor_b32 v{vAd+k}, {k<<6}, v{vAd}")
    a(f"s_lshl_b32 s{sT0}, s{sWq}, 12")
    a(f"v_xor_b32 v{t0}, v{g}, v{c}")
    a(f"v_lshlrev_b32 v{t0}, 4, v{t0}")
    a(f"v_lshl_add_u32 v{t0}, v{g}, 8, v{t0}")
    a(f"v_add_u32 v{vKd}, s{sT0}, v{t0}")
    for i in range(1, 4):
        a(f"v_xor_b32 v{vKd+i}, {i<<6}, v{vKd}")
    a(f"v_lshlrev_b32 v{t0}, 2, v{g}")
    a(f"v_xor_b32 v{t0}, v{t0}, v{c}")
    a(f"v_lshlrev_b32 v{t0}, 4, v{t0}")
    a(f"v_lshl_add_u32 v{t0}, v{g}, 8, v{t0}")
    a(f"v_add_u32 v{vVd}, s{sT0}, v{t0}")
    a(f"s_lshl_b32 s{sT1}, s{sE}, 14")
    a(f"v_xor_b32 v{t0}, v{hh_}, v{c}")
    a(f"v_lshlrev_b32 v{t0}, 4, v{t0}")
    a(f"v_lshl_add_u32 v{t0}, v{m_}, 8, v{t0}")
    a(f"v_add_u32 v{vA0k}, s{sT1}, v{t0}")
    a(f"v_and_b32 v{t0}, 1, v{g}")
    a(f"v_lshrrev_b32 v{t1}, 1, v{cp}")
    a(f"v_lshl_or_b32 v{t0}, v{t0}, 1, v{t1}")
    a(f"v_lshl_or_b32 v{t0}, v{rp}, 2, v{t0}")
    a(f"v_lshlrev_b32 v{t0}, 4, v{t0}")
    a(f"v_and_b32 v{t1}, 1, v{cp}")
    a(f"v_lshl_or_b32 v{t0}, v{t1}, 3, v{t0}")
    a(f"v_lshl_add_u32 v{t1}, v{hh_}, 2, v{rp}")
    a(f"v_lshl_add_u32 v{t0}, v{t1}, 8, v{t0}")
    a(f"v_add_u32 v{vA0v}, s{sT1}, v{t0}")
    a(f"v_and_b32 v{t0}, 1, v{g}")
    a(f"v_lshlrev_b32 v{t0}, 10, v{t0}")
    a(f"v_lshl_add_u32 v{t0}, v{hh_}, 8, v{t0}")
    a(f"v_lshl_add_u32 v{t0}, v{c}, 4, v{t0}")
    a(f"s_lshl_b32 s{sT0}, s{sWq}, 11")
    a(f"v_add_u32 v{t0}, s{sT0}, v{t0}")
    a(f"v_mov_b32 v{t1}, 0x40000000")
    a(f"v_cmp_gt_u32 vcc, 7168, v{t0}")
    a("s_nop 1")
    a(f"v_cndmask_b32 v{vOst}, v{t1}, v{t0}, vcc")
    a(f"v_lshlrev_b32 v27, 4, v{vLane}")
    a("s_lshl_b32 s7, s7, 1")
    a(f"s_add_u32 s7, s7, s{sE}")
    a("s_lshl_b32 s9, s8, 5")
    a("s_add_u32 s9, s9, s7")
    a("s_lshl_b32 s10, s9, 15")
    a("s_lshl_b32 s9, s9, 17")
    a(f"s_add_u32 s{sK}, s14, s9")
    a(f"s_addc_u32 s{sK+1}, s15, 0")
    a(f"s_mov_b32 s{sK+2}, 131072")
    a(f"s_mov_b32 s{sK+3}, 0x00020000")
    a(f"s_add_u32 s{sV}, s16, s9")
    a(f"s_addc_u32 s{sV+1}, s17, 0")
    a(f"s_mov_b32 s{sV+2}, 131072")
    a(f"s_mov_b32 s{sV+3}, 0x00020000")
    if PF_WO == 2:
        OPD = int(os.environ.get("OPD", "8"))
        RPW = OPD // 8
        a("s_lshr_b32 s10, s10, 13")
        a(f"s_add_u32 s10, s10, s{sWq}")
        a("s_lshr_b32 s11, s10, 8")
        a("s_and_b32 s10, s10, 255")
        a(f"s_mul_i32 s10, s10, {RPW*2048}")
        a("s_lshl_b32 s11, s11, 21")
        a("s_add_u32 s10, s10, s11")
        a(f"s_add_u32 s{sWO}, s94, s10")
        a(f"s_addc_u32 s{sWO+1}, s95, 0")
        a(f"s_mov_b32 s{sWO+2}, {RPW*2048}")
        a(f"s_mov_b32 s{sWO+3}, 0x00020000")
    else:
        a(f"s_add_u32 s{sWO}, s94, s10")
        a(f"s_addc_u32 s{sWO+1}, s95, 0")
        a(f"s_mov_b32 s{sWO+2}, 32768")
        a(f"s_mov_b32 s{sWO+3}, 0x00020000")
    a("s_lshl_b32 s9, s6, 3")
    a("s_add_u32 s9, s9, s8")
    a("s_lshl_b32 s9, s9, 7")
    a("s_lshl_b32 s10, s7, 2")
    a("s_add_u32 s9, s9, s10")
    a("s_mul_i32 s9, s9, 7168")
    a(f"s_add_u32 s{sO}, s52, s9")
    a(f"s_addc_u32 s{sO+1}, s53, 0")
    a(f"s_mov_b32 s{sO+2}, 28672")
    a(f"s_mov_b32 s{sO+3}, 0x00020000")
    a(f"s_mov_b32 s{sSlotR}, 0")
    a(f"s_mov_b32 s{sSlotW}, 131072")
    a(f"s_mov_b32 s{sKVoff}, 32768")
    for i in range(64):
        a(f"v_mov_b32 v{ACC+i}, 0")

    def q_rd_x(m):
        xb = m & 1
        for k in range(4):
            a(f"ds_read_b128 {vr(XB[xb]+k*4,4)}, v{vAd+4+k} offset:{(m&1)*16384}")
    def q_rd(buf, f, q):
        ks, mt = f >> 2, f & 3
        for hh in range(2):
            a(f"ds_read_b64_tr_b16 {vr(QB[buf]+f*4+hh*2,2)}, v{vAd+mt} offset:{q*16384+ks*8192+hh*2048}")
    def q_mm(buf, f, xb, par):
        ks, mt = f >> 2, f & 3
        a(f"{MF} {vr(acc(mt),16)}, {vr(QB[buf]+f*4,4)}, {vr(XB[xb]+(par*2+ks)*4,4)}, {vr(acc(mt),16)}")

    stamp(a, 1)
    a(f"s_waitcnt vmcnt({vm.need(('x',0),('wq',0))})")
    a("s_barrier")
    q_rd_x(0)
    for f in range(8):
        q_rd(0, f, 0)

    kvq = kv_pieces(0) + kv_pieces(1)
    kv_sched = {}
    nit = 29 - KV_START
    for idx, p in enumerate(kvq):
        it = KV_START + (idx * nit) // len(kvq)
        kv_sched.setdefault(it, []).append(p)
    sPF = 98
    a(f"s_lshl_b32 s{sPF}, s{sWq}, 13" if PF_WO != 2 else f"s_mov_b32 s{sPF}, 0")
    def pf_piece():
        a(f"buffer_load_dword v26, v27, {sr(sWO,4)}, s{sPF} offen")
        a(f"s_add_u32 s{sPF}, s{sPF}, 1024")
        vm.issue("pf", 1)
    PFD = 24 if False else 26
    EARLYR = int(os.environ.get("EARLYR", "0"))
    BURST = int(os.environ.get("BURST", "0"))
    if EARLYR:
        EREG = {2: SS, 3: SS + 16}
        def kvr_pieces(n):
            isK = n % 2 == 0
            srd = sK if isK else sV
            out = []
            for i in range(4):
                def p(i=i):
                    a(f"s_mov_b32 s{sT0}, {(n>>1)*16384}")
                    a(f"buffer_load_dwordx4 {vr(EREG[n]+i*4,4)}, v{kv_voff(isK,i)}, {sr(srd,4)}, s{sT0} offen offset:{i*1024} {KVF}")
                    vm.issue(("kvr", n), 1)
                out.append(p)
            return out
        def wr_pieces(n):
            def p():
                a(f"s_waitcnt vmcnt({vm.need(('kvr', n))})")
                a(f"s_add_u32 s{sT0}, s{sM0kv}, {n*32768}")
                a(f"v_add_u32 v{vT}, s{sT0}, v27")
                for i in range(4):
                    a(f"ds_write_b128 v{vT}, {vr(EREG[n]+i*4,4)} offset:{i*1024}")
            return [p]
        kv_sched = {}
        kvq = kv_pieces(0) + kv_pieces(1) + kvr_pieces(2) + kvr_pieces(3)
        nit = 28 - KV_START
        for idx, p in enumerate(kvq):
            it = KV_START + (idx * nit) // len(kvq)
            kv_sched.setdefault(it, []).append(p)
        kv_sched.setdefault(29, []).extend(wr_pieces(2))
        kv_sched.setdefault(31, []).extend(wr_pieces(3))
    elif BURST:
        kv_sched = {}
        if BURST == 1:
            for idx, p in enumerate(kvq):
                it = KV_START + (idx * nit) // len(kvq)
                kv_sched.setdefault(it, []).append(p)
        kv_sched.setdefault(29, []).extend(kv_pieces(2))
        kv_sched.setdefault(31, []).extend(kv_pieces(3))
    else:
        if PF_WO: kv_sched.setdefault(29, []).append(pf_piece)
        kv_sched.setdefault(29, []).extend(kv_pieces(2))
        kv_sched.setdefault(31, []).extend(kv_pieces(3))
    sPhase, sRelax = 90, 91
    NB = 8 if BURST == 1 else 16
    if BURST:
        a("s_lshr_b32 s9, s2, 3")
        a("s_mul_i32 s10, s9, 52")
        a("s_lshr_b32 s10, s10, 8")
        a("s_mul_i32 s10, s10, 5")
        a(f"s_sub_u32 s{sPhase}, s9, s10")
        a(f"s_mov_b32 s{sRelax}, 0")

    def q_iter(cn):
        buf = cn & 1
        m = cn >> 1
        xb = m & 1
        has_next = cn < 31
        needs = []
        if has_next: needs.append(("wq", cn + 1))
        if cn % 2 == 1 and m + 1 <= 15: needs.append(("x", m + 1))
        w = vm.need(*needs) if needs else None
        if BURST and cn < KV_START:
            lid = f"{cn&3}"
            a(f"s_cmp_lg_u32 s{sRelax}, 0")
            a(f"s_cbranch_scc1 L_rlx{lid}")
            a(f"s_waitcnt vmcnt({w}) lgkmcnt(0)")
            a(f"s_branch L_go{lid}")
            a.lab(f"L_rlx{lid}")
            a(f"s_waitcnt vmcnt({w+NB}) lgkmcnt(0)")
            a(f"s_sub_u32 s{sRelax}, s{sRelax}, 1")
            a.lab(f"L_go{lid}")
        elif w is not None:
            a(f"s_waitcnt vmcnt({w}) lgkmcnt(0)")
        else:
            a("s_waitcnt lgkmcnt(0)")
        a("s_barrier")
        if BURST and cn < KV_START and (cn & 3) == 0:
            a(f"s_cmp_lg_u32 s{sCnt}, s{sPhase}")
            a("s_cbranch_scc1 L_noburst")
            sv = list(vm.ops)
            if BURST == 2:
                for p in kv_pieces(0) + kv_pieces(1): p()
            for i in range(8): pf_piece()
            vm.ops = sv
            a(f"s_mov_b32 s{sRelax}, 2")
            a.lab("L_noburst")
        pieces = []
        if cn % 2 == 0 and m + 2 <= 15: pieces += x_pieces(m + 2)
        if cn + 4 <= 31: pieces += wq_pieces(cn + 4)
        pieces += kv_sched.get(cn, [])
        slots = {}
        for i, p in enumerate(pieces):
            slots.setdefault((i * 8) // max(len(pieces), 1), []).append(p)
        rds = []
        if has_next:
            rds += [(lambda f=f: q_rd(buf ^ 1, f, (cn + 1) & 3)) for f in range(8)]
        if cn % 2 == 1 and m + 1 <= 15:
            rds.append(lambda: q_rd_x(m + 1))
        RPM = int(os.environ.get("RPM", "2"))
        for f in range(8):
            q_mm(buf, f, xb, cn & 1)
            for r_ in rds[f*RPM:(f+1)*RPM]:
                r_()
            for p in slots.get(f, []):
                p()
        return w

    ngrp = KV_START // 4
    a(f"s_mov_b32 s{sCnt}, 0")
    a.lab("L_qp_loop")
    ws0 = [q_iter(cn) for cn in range(4)]
    a(f"s_add_u32 s{sCnt}, s{sCnt}, 1")
    a(f"s_cmp_lt_u32 s{sCnt}, {ngrp}")
    a("s_cbranch_scc1 L_qp_loop")
    save = a.l
    for gI in range(1, ngrp):
        a.l = []
        wsg = [q_iter(gI * 4 + k) for k in range(4)]
        assert wsg == ws0, (wsg, ws0)
    a.l = save
    for cn in range(KV_START, 32):
        q_iter(cn)

    stamp(a, 2)
    a("s_nop 7")
    a("s_nop 3")
    NEGM = 32
    for mt in range(4):
        for s_ in range(2):
            q = QF + (mt * 2 + s_) * 4
            x = acc(mt) + s_ * 8
            for j in range(8):
                a(f"v_mul_f32 v{x+j}, s{sC}, v{x+j}")
            for j in range(4):
                a(f"v_cvt_pk_bf16_f32 v{q+j}, v{x+2*j}, v{x+2*j+1}")
    for i in range(64):
        a(f"v_mov_b32 v{ACC+i}, 0")
    for i in range(16):
        a(f"v_mov_b32 v{NEGM+i}, 0")
    a(f"v_mov_b32 v{vLp}, 0")
    a(f"v_mov_b32 v{vLp+1}, 0")
    sFirst = 97
    a(f"s_mov_b32 s{sFirst}, 1")

    def adv_slot(s):
        a(f"s_add_u32 s{s}, s{s}, 32768")
        a(f"s_cmp_ge_u32 s{s}, 163840")
        a(f"s_cselect_b32 s{s}, 0, s{s}")
    def dma_kv_pieces(isK):
        srd = sK if isK else sV
        out = []
        for i in range(4):
            def p(i=i):
                a(f"s_add_u32 m0, s{sSlotW}, s{sM0kv}")
                a("s_nop 0")
                if not os.environ.get("X_NODMA"): a(f"buffer_load_dwordx4 v{kv_voff(isK,i)}, {sr(srd,4)}, s{sKVoff} offen offset:{i*1024} {KVF} lds")
                if i == 3:
                    if not isK and not os.environ.get("NOADVKV"):
                        a(f"s_add_u32 s{sKVoff}, s{sKVoff}, 16384")
                    adv_slot(sSlotW)
            out.append(p)
        return out
    def k_addr():
        a(f"v_add_u32 v{vAd}, s{sSlotR}, v{vA0k}")
        for ks in range(1, 8):
            a(f"v_xor_b32 v{vAd+ks}, {ks<<5}, v{vAd}")
        adv_slot(sSlotR)
    def v_addr():
        a(f"v_add_u32 v{vAv}, s{sSlotR}, v{vA0v}")
        for T in range(1, 4):
            a(f"v_xor_b32 v{vAv+T}, {T<<6}, v{vAv}")
        adv_slot(sSlotR)
    XR_, YR_ = FR, FR + 32
    def rdk(t, ks):
        if not os.environ.get("X_NOLDS"): a(f"ds_read_b128 {vr(XR_+ks*4,4)}, v{vAd+ks} offset:{t*8192}")
    def rdv(t, j):
        s_, T = j >> 2, j & 3
        for hh in range(2):
            if not os.environ.get("X_NOLDS"): a(f"ds_read_b64_tr_b16 {vr(YR_+j*4+hh*2,2)}, v{vAv+T} offset:{(t*32+s_*16+hh*8)*256}")
    def mmk(t, ks):
        cin = vr(NEGM,16) if ks == 0 else vr(ss(t),16)
        a(f"{MF} {vr(ss(t),16)}, {vr(XR_+ks*4,4)}, {vr(QF+ks*4,4)}, {cin}")
    def mmv(t, j):
        s_, T = j >> 2, j & 3
        a(f"{MF} {vr(acc(T),16)}, {vr(YR_+j*4,4)}, {vr(pf(t,s_),4)}, {vr(acc(T),16)}")
    def cvt_ops(t):
        ops = []
        for s_ in range(2):
            p = pf(t, s_)
            x = ss(t) + s_ * 8
            for j in range(4):
                ops.append(f"v_cvt_pk_bf16_f32 v{p+j}, v{x+2*j}, v{x+2*j+1}")
        return ops
    NOSM = os.environ.get("X_NOSM")
    uid = [0]
    rare = []
    def sm_a(t, first_chk):
        if NOSM: return []
        uid[0] += 1
        u = uid[0]
        ops = []
        o = ops.append
        vals = [ss(t) + r for r in range(16)]
        mx, t1_ = vT, vT + 1
        o(f"v_max3_f32 v{mx}, v{vals[0]}, v{vals[1]}, v{vals[2]}")
        o(f"v_max3_f32 v{t1_}, v{vals[3]}, v{vals[4]}, v{vals[5]}")
        o(f"v_max3_f32 v{mx}, v{mx}, v{vals[6]}, v{vals[7]}")
        o(f"v_max3_f32 v{t1_}, v{t1_}, v{vals[8]}, v{vals[9]}")
        o(f"v_max3_f32 v{mx}, v{mx}, v{vals[10]}, v{vals[11]}")
        o(f"v_max3_f32 v{t1_}, v{t1_}, v{vals[12]}, v{vals[13]}")
        o(f"v_max3_f32 v{mx}, v{mx}, v{vals[14]}, v{vals[15]}")
        o(f"v_max_f32 v{mx}, v{mx}, v{t1_}")
        if first_chk:
            o(f"s_branch L_rare{u}\nL_back{u}:")
        else:
            o(f"v_cmp_lt_f32 vcc, 0x41000000, v{mx}\n    s_cbranch_vccnz L_rare{u}\nL_back{u}:")
        r = [f"L_rare{u}:"]
        R = lambda x: r.append("    " + x)
        R("s_nop 15")
        R(f"v_mov_b32 v{t1_}, v{mx}")
        R("s_nop 1")
        R(f"v_permlane32_swap_b32 v{mx}, v{t1_}")
        R("s_nop 1")
        R(f"v_max_f32 v{mx}, v{mx}, v{t1_}")
        if not first_chk:
            R(f"v_max_f32 v{mx}, 0, v{mx}")
            R(f"v_sub_f32 v{t1_}, 0, v{mx}")
            R(f"v_exp_f32 v{t1_}, v{t1_}")
        for i in range(16):
            R(f"v_sub_f32 v{NEGM+i}, v{NEGM+i}, v{mx}")
        for i in range(16):
            R(f"v_sub_f32 v{vals[i]}, v{vals[i]}, v{mx}")
        if not first_chk:
            R(f"v_mul_f32 v{vLp}, v{vLp}, v{t1_}")
            R(f"v_mul_f32 v{vLp+1}, v{vLp+1}, v{t1_}")
            for i in range(64):
                R(f"v_mul_f32 v{ACC+i}, v{ACC+i}, v{t1_}")
            for i in range(16):
                R(f"v_mul_f32 v{ss(1-t)+i}, v{ss(1-t)+i}, v{t1_}")
            for x in cvt_ops(1 - t):
                R(x)
        R("s_nop 1")
        R(f"s_branch L_back{u}")
        rare.append("\n".join(r))
        for x in vals[:8]:
            o(f"v_exp_f32 v{x}, v{x}")
        return ops
    def sm_b(t):
        if NOSM: return []
        ops = []
        o = ops.append
        vals = [ss(t) + r for r in range(16)]
        for x in vals[8:]:
            o(f"v_exp_f32 v{x}, v{x}")
        ops += cvt_ops(t)
        if PK:
            for i in range(0, 16, 2):
                o(f"v_pk_add_f32 {vr(vLp,2)}, {vr(vLp,2)}, {vr(vals[i],2)}")
        else:
            for i in range(0, 16, 2):
                o(f"v_add_f32 v{vLp}, v{vLp}, v{vals[i]}")
                o(f"v_add_f32 v{vLp+1}, v{vLp+1}, v{vals[i+1]}")
        return ops

    def group(mm, rd, ops, extra, nwait):
        k = 0
        for j in range(8):
            issued_now = min(2 * j, 8) * RD_PER[0] if rd else 0
            w = (7 - j) * nwait + issued_now
            mm(j)
            if rd and j < 4:
                rd(2 * j); rd(2 * j + 1)
            tgt = ((j + 1) * len(ops)) // 8
            while k < tgt:
                a(ops[k]); k += 1
            if j in extra:
                extra[j]()
    RD_PER = [1]

    NV = 9 if (PF_WO and not BURST) else 8
    a("s_waitcnt vmcnt(0) lgkmcnt(0)" if EARLYR else ("s_waitcnt vmcnt(8)" if BURST == 2 else "s_waitcnt vmcnt(12)"))
    a("s_barrier")
    k_addr()
    for ks in range(8):
        rdk(0, ks)
    a("s_waitcnt lgkmcnt(0)")
    for ks in range(8):
        mmk(0, ks)
    for ks in range(8):
        rdk(1, ks)
    a("s_nop 7")
    a("s_nop 3")
    for o in sm_a(0, True):
        a(o)
    a(f"s_mov_b32 s{sCnt}, 0")
    a.lab("L_at_loop")
    a(f"s_waitcnt vmcnt({NV}) lgkmcnt(0)")
    a("s_barrier")
    v_addr()
    if PF_WO and not BURST: pf_piece()
    pvv = dma_kv_pieces(False)
    pkk = dma_kv_pieces(True)
    RD_PER[0] = 2
    group(lambda j: mmk(1, j), lambda j: rdv(0, j), sm_b(0), {1: pkk[0], 3: pkk[1], 5: pkk[2], 7: pkk[3]}, 0)
    a(f"s_waitcnt vmcnt({NV})")
    a("s_barrier")
    k_addr()
    RD_PER[0] = 1
    a("s_waitcnt lgkmcnt(0)")
    group(lambda j: mmv(0, j), lambda j: rdk(0, j), ["s_nop 3"] + sm_a(1, False), {1: pvv[0], 3: pvv[1], 5: pvv[2], 7: pvv[3]}, 0)
    a(f"s_add_u32 s{sCnt}, s{sCnt}, 1")
    a(f"s_cmp_eq_u32 s{sCnt}, 8")
    a("s_cbranch_scc1 L_at_tail")
    RD_PER[0] = 2
    a("s_waitcnt lgkmcnt(0)")
    group(lambda j: mmk(0, j), lambda j: rdv(1, j), sm_b(1), {}, 0)
    RD_PER[0] = 1
    a("s_waitcnt lgkmcnt(0)")
    a("s_nop 1")
    group(lambda j: mmv(1, j), lambda j: rdk(1, j), ["s_nop 7"] + sm_a(0, False), {}, 0)
    a("s_branch L_at_loop")
    for r in rare:
        a.l.append(r)
    a.lab("L_at_tail")
    a("s_waitcnt lgkmcnt(0)")
    for j in range(8):
        rdv(1, j)
    for o in sm_b(1):
        a(o)
    a("s_waitcnt lgkmcnt(0)")
    a("s_nop 1")
    for j in range(8):
        mmv(1, j)
    stamp(a, 3)
    a("s_nop 7")
    a("s_nop 3")
    l = vLp
    a(f"v_add_f32 v{l}, v{l}, v{l+1}")
    a(f"v_mov_b32 v{vT+1}, v{l}")
    a("s_nop 1")
    a(f"v_permlane32_swap_b32 v{l}, v{vT+1}")
    a("s_nop 1")
    a(f"v_add_f32 v{l}, v{l}, v{vT+1}")
    a(f"v_rcp_f32 v{l}, v{l}")
    a("s_nop 0")
    a(f"s_mov_b32 s{sT1}, 7168")
    a(f"s_mov_b32 s{sT2}, 14336")
    a(f"s_mov_b32 s{sT3}, 21504")
    for T in range(4):
        for s_ in range(2):
            o = FR + (T * 2 + s_) * 4
            x = acc(T) + s_ * 8
            for r in range(8):
                a(f"v_mul_f32 v{x+r}, v{x+r}, v{l}")
            for j in range(4):
                a(f"v_cvt_pk_bf16_f32 v{o+j}, v{x+2*j}, v{x+2*j+1}")
            so = "0" if T == 0 else f"s{sT0+T}"
            a(f"buffer_store_dwordx4 {vr(o,4)}, v{vOst}, {sr(sO,4)}, {so} offen offset:{s_*512} {os.environ.get('OSF','')}")
    a.lab("L_attn_fin")
    if FUSE:
        stamp(a, 4)
        gen_phase2(a, sW)
    if DIAG:
        a("s_waitcnt vmcnt(0)")
        stamp(a, 8 if FUSE else 4)
        diag_dump(a, 52, sW, 128 << 20, 3)
    a.lab("L_attn_end")
    a("s_endpgm")

def gen_oproj(a):
    NST = OP_DEPTH
    assert 32 % NST == 0
    sW = 3
    sOo, sWO, sOUT = 20, 24, 28
    sKo, sKw = 32, 33
    sPo, sPw = 34, 35
    sCnt = 36
    sBig = 39
    sRing = 40
    vLane = 1
    vO0, vO1 = 2, 3
    vWd = 4
    vRd = 8
    g, c = 12, 13
    vT = 14
    ST = 32
    AF = ST + NST * 28
    def of(st, nt): return ST + st * 28 + nt * 4
    def acc(i, nt): return (nt * 4 + i) * 4
    RING = NST * 4096

    a.lab("oproj_kernel")
    a("s_cmp_ge_u32 s2, 256")
    a("s_cbranch_scc1 L_op_end")
    stamp(a, 0)
    if DIAG: a("s_memrealtime s[78:79]")
    a("s_and_b32 s4, s2, 7")
    a("s_lshr_b32 s5, s2, 3")
    a("s_lshr_b32 s6, s4, 2")
    a("s_bfe_u32 s7, s4, 0x10001")
    a("s_lshl_b32 s7, s7, 2")
    a("s_and_b32 s8, s5, 3")
    a("s_add_u32 s7, s7, s8")
    a("s_and_b32 s8, s4, 1")
    a("s_lshl_b32 s8, s8, 3")
    a("s_lshr_b32 s9, s5, 2")
    a("s_add_u32 s8, s8, s9")
    a("s_mul_i32 s9, s6, 40")
    a("s_add_u32 s10, s0, s9")
    a("s_addc_u32 s11, s1, 0")
    a("s_load_dwordx2 s[12:13], s[10:11], 32")
    a("s_load_dwordx2 s[14:15], s[0:1], 80")
    a("s_load_dwordx2 s[16:17], s[0:1], 96")
    a(f"v_and_b32 v{vLane}, 63, v0")
    a("v_lshrrev_b32 v8, 6, v0")
    a("s_nop 0")
    a(f"v_readfirstlane_b32 s{sW}, v8")
    a(f"s_mov_b32 s{sBig}, 0x7f000000")
    a(f"v_lshrrev_b32 v{g}, 4, v{vLane}")
    a(f"v_and_b32 v{c}, 15, v{vLane}")
    a(f"v_lshlrev_b32 v{vO0}, 4, v{vLane}")
    a(f"v_add_u32 v{vO1}, 4096, v{vO0}")
    a(f"s_mul_i32 s{sRing}, s{sW}, {RING}")
    t0, t1, t2 = 20, 21, 22
    a(f"v_lshrrev_b32 v{t0}, 3, v{vLane}")
    a(f"v_bfe_u32 v{t1}, v{vLane}, 4, 2")
    a(f"v_lshlrev_b32 v{t1}, 1, v{t1}")
    a(f"v_and_b32 v{t2}, 7, v{vLane}")
    a(f"v_xor_b32 v{t1}, v{t1}, v{t2}")
    a(f"v_lshlrev_b32 v{t1}, 4, v{t1}")
    a(f"v_lshl_add_u32 v{vWd}, v{t0}, 11, v{t1}")
    for i in range(1, 4):
        a(f"v_add_u32 v{vWd+i}, {i*(8*2048-1024)}, v{vWd}")
    rp, cp = 23, 24
    a(f"v_bfe_u32 v{rp}, v{vLane}, 2, 2")
    a(f"v_and_b32 v{cp}, 3, v{vLane}")
    a(f"v_and_b32 v{t0}, 1, v{g}")
    a(f"v_lshlrev_b32 v{t0}, 1, v{t0}")
    a(f"v_lshrrev_b32 v{t1}, 1, v{rp}")
    a(f"v_add_u32 v{t0}, v{t0}, v{t1}")
    a(f"v_lshlrev_b32 v{t0}, 1, v{t0}")
    a(f"v_lshrrev_b32 v{t1}, 1, v{cp}")
    a(f"v_xor_b32 v{t0}, v{t0}, v{t1}")
    a(f"v_lshlrev_b32 v{t0}, 4, v{t0}")
    a(f"v_and_b32 v{t1}, 1, v{cp}")
    a(f"v_lshl_or_b32 v{t0}, v{t1}, 3, v{t0}")
    a(f"v_and_b32 v{t1}, 1, v{g}")
    a(f"v_lshl_add_u32 v{t1}, v{t1}, 2, v{rp}")
    a(f"v_lshrrev_b32 v{t2}, 1, v{g}")
    a(f"v_lshl_add_u32 v{t1}, v{t2}, 4, v{t1}")
    a(f"v_lshl_add_u32 v{t0}, v{t1}, 7, v{t0}")
    a(f"v_add_u32 v{vRd}, s{sRing}, v{t0}")
    for i in range(1, 4):
        a(f"v_xor_b32 v{vRd+i}, {i<<5}, v{vRd}")
    a("s_waitcnt lgkmcnt(0)")
    a("s_lshl_b32 s9, s6, 3")
    a("s_add_u32 s9, s9, s7")
    a("s_mul_i32 s9, s9, 917504")
    a(f"s_add_u32 s{sOo}, s16, s9")
    a(f"s_addc_u32 s{sOo+1}, s17, 0")
    a(f"s_mov_b32 s{sOo+2}, 917504")
    a(f"s_mov_b32 s{sOo+3}, 0x00020000")
    a("s_lshl_b32 s9, s8, 7")
    a(f"s_add_u32 s{sWO}, s12, s9")
    a(f"s_addc_u32 s{sWO+1}, s13, 0")
    a(f"s_sub_u32 s{sWO+2}, 8388608, s9")
    a(f"s_mov_b32 s{sWO+3}, 0x00020000")
    a("s_mul_i32 s10, s7, 458752")
    a("s_lshl_b32 s11, s6, 11")
    a("s_add_u32 s10, s10, s11")
    a("s_add_u32 s10, s10, s9")
    a(f"s_add_u32 s{sOUT}, s14, s10")
    a(f"s_addc_u32 s{sOUT+1}, s15, 0")
    a(f"s_mov_b32 s{sOUT+2}, {111*4096+128}")
    a(f"s_mov_b32 s{sOUT+3}, 0x00020000")
    OROT = int(os.environ.get("OROT", "0"))
    sBo, sBw, sStep = 41, 42, 43
    a(f"s_mul_i32 s{sBo}, s{sW}, {32*7168}")
    a(f"s_lshl_b32 s{sBw}, s{sW}, 21")
    a(f"s_and_b32 s{sStep}, s7, 3")
    a(f"s_mul_i32 s{sStep}, s{sStep}, {OROT}")
    def set_off():
        a(f"s_and_b32 s{sStep}, s{sStep}, 31")
        a(f"s_mul_i32 s{sKo}, s{sStep}, 7168")
        a(f"s_add_u32 s{sKo}, s{sKo}, s{sBo}")
        a(f"s_lshl_b32 s{sKw}, s{sStep}, 16")
        a(f"s_add_u32 s{sKw}, s{sKw}, s{sBw}")
        a(f"s_add_u32 s{sStep}, s{sStep}, 1")
    set_off()

    def ld_wo(st, so):
        a(f"s_add_u32 m0, s{sRing}, {st*4096}")
        a("s_nop 0")
        for i in range(4):
            a(f"buffer_load_dwordx4 v{vWd+i}, {sr(sWO,4)}, s{so} offen offset:{i*1024} {os.environ.get('OPF','')} lds")
    RPF = 1 if PF_WO == 2 else 0
    OPD = int(os.environ.get("OPD", "8"))
    sPFk, sPFe = 44, 45
    vPFa, vPFdst = 25, 26
    if RPF:
        a(f"v_lshrrev_b32 v{vPFa}, 3, v{vLane}")
        a(f"v_lshlrev_b32 v{vPFa}, 11, v{vPFa}")
        a(f"v_and_b32 v{vPFdst}, 7, v{vLane}")
        a(f"v_lshl_add_u32 v{vPFa}, v{vPFdst}, 4, v{vPFa}")
        a("s_and_b32 s9, s7, 3")
        a("s_lshl_b32 s9, s9, 14")
        a(f"v_add_u32 v{vPFa}, s9, v{vPFa}")
        a(f"s_mov_b32 s{sPFk}, {OPD}")
    def ld_o(st, so):
        for nt in range(7):
            v = vO0 if nt < 4 else vO1
            a(f"buffer_load_dwordx4 {vr(of(st,nt),4)}, v{v}, {sr(sOo,4)}, s{so} offen offset:{(nt&3)*1024} {os.environ.get('OLF','')}")
        if RPF:
            a(f"s_lshl_b32 s{sPFe}, s{sPFk}, 16")
            a(f"s_add_u32 s{sPFe}, s{sPFe}, s{sBw}")
            a(f"s_cmp_lt_u32 s{sPFk}, 32")
            a(f"s_cselect_b32 s{sPFe}, s{sPFe}, s{sBig}")
            a(f"buffer_load_dword v{vPFdst}, v{vPFa}, {sr(sWO,4)}, s{sPFe} offen")
            a(f"s_add_u32 s{sPFk}, s{sPFk}, 1")
    def rd_af(st, buf):
        for i in range(4):
            for hh in range(2):
                a(f"ds_read_b64_tr_b16 {vr(AF+buf*16+i*4+hh*2,2)}, v{vRd+i} offset:{st*4096+hh*1024}")
    for st in range(NST):
        ld_wo(st, sKw)
        ld_o(st, sKo)
        set_off()
    for i in range(112):
        a(f"v_accvgpr_write_b32 a{i}, 0")
    stamp(a, 1)
    a(f"s_waitcnt vmcnt({(NST-1)*(11+RPF)+7+RPF})")
    rd_af(0, 0)
    a(f"s_mov_b32 s{sCnt}, 0")
    a.lab("L_op_loop")
    for st in range(NST):
        buf = st & 1
        nst = (st + 1) % NST
        a(f"s_cmp_lt_u32 s{sCnt}, {32//NST - 1}")
        a(f"s_cselect_b32 s{sPw}, s{sKw}, s{sBig}")
        a(f"s_cselect_b32 s{sPo}, s{sKo}, s{sBig}")
        a(f"s_waitcnt vmcnt({7+RPF+(NST-2)*(11+RPF)}) lgkmcnt(0)")
        ld_wo(st, sPw)
        rd_af(nst, buf ^ 1)
        for nt in range(7):
            for i in range(4):
                a(f"v_mfma_f32_16x16x32_bf16 {ar(acc(i,nt),4)}, {vr(AF+buf*16+i*4,4)}, {vr(of(st,nt),4)}, {ar(acc(i,nt),4)}")
        ld_o(st, sPo)
        set_off()
    a(f"s_add_u32 s{sCnt}, s{sCnt}, 1")
    a(f"s_cmp_lt_u32 s{sCnt}, {32//NST}")
    a("s_cbranch_scc1 L_op_loop")
    stamp(a, 2)
    a("s_waitcnt vmcnt(0) lgkmcnt(0)")
    a("s_barrier")
    a(f"v_add_u32 v{vT+3}, 57344, v{vO0}")
    for wv in range(4):
        a(f"s_cmp_lg_u32 s{sW}, {wv}")
        a(f"s_cbranch_scc1 L_epw{wv}")
        for i in range(4):
            if i == wv: continue
            slot = (wv - i - 1) & 3
            base = i * 21504 + slot * 7168
            vb, off = (vO0, base) if base + 6144 < 65536 else (vT + 3, base - 57344)
            if i == 3 or (i == 2):
                pass
            for nt in range(7):
                o_ = base + nt * 1024
                if o_ < 65536:
                    a(f"ds_write_b128 v{vO0}, {ar(acc(i,nt),4)} offset:{o_}")
                else:
                    a(f"ds_write_b128 v{vT+3}, {ar(acc(i,nt),4)} offset:{o_-57344}")
        for nt in range(7):
            for r in range(4):
                a(f"v_accvgpr_read_b32 v{32+nt*4+r}, a{acc(wv,nt)+r}")
        a.lab(f"L_epw{wv}")
    a("s_waitcnt lgkmcnt(0)")
    a("s_barrier")
    a(f"s_mul_i32 s4, s{sW}, 21504")
    a(f"v_add_u32 v{vT}, s4, v{vO0}")
    a(f"v_lshlrev_b32 v{vT+2}, 12, v{c}")
    a(f"v_lshl_add_u32 v{vT+2}, v{g}, 3, v{vT+2}")
    a(f"s_lshl_b32 s4, s{sW}, 5")
    a(f"v_add_u32 v{vT+2}, s4, v{vT+2}")
    R = 64
    for nt in range(7):
        for sl in range(3):
            a(f"ds_read_b128 {vr(R+(nt*3+sl)*4,4)}, v{vT} offset:{sl*7168+nt*1024}")
    for nt in range(7):
        a(f"s_waitcnt lgkmcnt({min(15, (6-nt)*3)})")
        for r in range(4):
            x = 32 + nt * 4 + r
            b0 = R + nt * 12 + r
            a(f"v_add_f32 v{b0}, v{b0}, v{b0+4}")
            a(f"v_add_f32 v{x}, v{x}, v{b0+8}")
            a(f"v_add_f32 v{x}, v{x}, v{b0}")
        x = 32 + nt * 4
        O = 160 + nt * 2
        a(f"v_cvt_pk_bf16_f32 v{O}, v{x}, v{x+1}")
        a(f"v_cvt_pk_bf16_f32 v{O+1}, v{x+2}, v{x+3}")
        a(f"s_mov_b32 s5, {nt*65536}")
        a(f"buffer_store_dwordx2 {vr(O,2)}, v{vT+2}, {sr(sOUT,4)}, s5 offen {os.environ.get('OUTF','')}")
    a.lab("L_op_fin")
    if DIAG:
        a("s_waitcnt vmcnt(0)")
        stamp(a, 3)
        diag_dump(a, 16, sW, 129 << 20)
    a.lab("L_op_end")
    a("s_endpgm")
    return AF + 32


HEADER = open("cdna_kernels/" + NAME + ".s.ref").read().split("; Override launch")[0]

def kd(name, vgpr, accum, sgpr=102):
    return f""".amdhsa_kernel {name}
  .amdhsa_next_free_vgpr {vgpr}
  .amdhsa_next_free_sgpr {sgpr}
  .amdhsa_accum_offset {accum}
  .amdhsa_group_segment_fixed_size 0
  .amdhsa_kernarg_size 104
  .amdhsa_user_sgpr_count 2
  .amdhsa_user_sgpr_kernarg_segment_ptr 1
  .amdhsa_system_sgpr_workgroup_id_x 1
.end_amdhsa_kernel
"""

def main():
    out = HEADER
    out += "; @launch kernel=attn_kernel grid=(256,1,1) block=(512,1,1) lds=163840\n"
    if not FUSE: out += "; @launch kernel=oproj_kernel grid=(256,1,1) block=(256,1,1) lds=114688\n"
    out += '.amdgcn_target "amdgcn-amd-amdhsa--gfx950"\n.text\n'
    for name, fn in ((("attn_kernel", gen_attn),) if FUSE else (("attn_kernel", gen_attn), ("oproj_kernel", gen_oproj))):
        a = A()
        fn(a)
        out += f".globl {name}\n.p2align 8\n.type {name},@function\n" + a.text()
    out += '.section .rodata,"a"\n.p2align 6\n'
    out += kd("attn_kernel", 256, 256)
    if not FUSE:
        out += ".p2align 6\n"
        out += kd("oproj_kernel", 368, 256)
    path = sys.argv[1] if len(sys.argv) > 1 else "cdna_kernels/" + NAME + ".s"
    open(path, "w").write(out)

if __name__ == "__main__":
    main()
```
